```python
import torch

def _softmax(x, axis=-1):
    return torch.softmax(x, dim=axis)
def _gelu(x):
    return torch.nn.functional.gelu(x, approximate="tanh")
def _silu(x):
    return torch.nn.functional.silu(x)
def _sigmoid(x):
    return torch.sigmoid(x)
def _layernorm(x, axis=-1, eps=1e-5):
    m = x.mean(dim=axis, keepdim=True)
    v = x.var(dim=axis, keepdim=True, unbiased=False)
    return (x - m) / torch.sqrt(v + eps)
def _scatter_add(tgt, idx, src, axis=0):
    return tgt.clone().index_add_(axis, idx, src)
def _segment_sum(src, seg, n):
    out = torch.zeros((n,) + src.shape[1:], dtype=src.dtype)
    return out.index_add_(0, seg, src)
def _pad(x, pw):
    flat = tuple(v for pair in reversed(pw) for v in pair)
    return torch.nn.functional.pad(x, flat)

kernel_name = 'recurrent_scan__sliding_block_cached__dense_activation_gelu__decode'

def setup_inputs():

    _w = (lambda a: (lambda t: t.to(torch.bfloat16) if t.is_floating_point() else t)(torch.as_tensor(a)))
    def _A_setup():
        B, Sq, D = 1, 1, 512
        Hq, Hkv, Sk, Dh = 32, 8, 32768, 128
        assert Hq % Hkv == 0, (Hq, Hkv)
        return {
            "x": _w((lambda *s: torch.randn(*s, dtype=torch.bfloat16) * 0.4)(B, Sq, D)),
            "k_cache": _w((lambda *s: torch.randn(*s, dtype=torch.bfloat16) * 1.6)(B, Hkv, Sk, Dh)),
            "v_cache": _w((lambda *s: torch.randn(*s, dtype=torch.bfloat16) * 1.6)(B, Hkv, Sk, Dh)),
            "wq": _w((lambda *s: torch.randn(*s, dtype=torch.bfloat16) * 1.6)(D, Hq * Dh) * (D ** -0.5)),
            "wo": _w((lambda *s: torch.randn(*s, dtype=torch.bfloat16) * 1.6)(Hq * Dh, D) * ((Hq * Dh) ** -0.5)),
        }
    _A_in = _A_setup()

    def _B_setup():
        B, S, D, F = 1, 1, 512, 1792
        return {
            "x": _w((lambda *s: torch.randn(*s, dtype=torch.bfloat16) * 0.4)(B, S, D)),
            "w1": _w((lambda *s: torch.randn(*s, dtype=torch.bfloat16) * 1.6)(D, F) * (D ** -0.5)),
            "b1": _w((lambda *s: torch.randn(*s, dtype=torch.bfloat16) * 1.6)(F) * 0.01),
            "w2": _w((lambda *s: torch.randn(*s, dtype=torch.bfloat16) * 1.6)(F, D) * (F ** -0.5)),
            "b2": _w((lambda *s: torch.randn(*s, dtype=torch.bfloat16) * 1.6)(D) * 0.01),
        }
    _B_in = _B_setup()

    return {
        "A_x": _A_in["x"],
        "A_k_cache": _A_in["k_cache"],
        "A_v_cache": _A_in["v_cache"],
        "A_wq": _A_in["wq"],
        "A_wo": _A_in["wo"],
        "B_x": _B_in["x"],
        "B_w1": _B_in["w1"],
        "B_b1": _B_in["b1"],
        "B_w2": _B_in["w2"],
        "B_b2": _B_in["b2"],
    }

def reference(A_x, A_k_cache, A_v_cache, A_wq, A_wo, B_x, B_w1, B_b1, B_w2, B_b2):
    def _A_ref(x, k_cache, v_cache, wq, wo):
        B, Sq, D = x.shape
        Hq, Dh = 32, 128
        Hkv, Sk = k_cache.shape[1], k_cache.shape[2]
        W = min(4096, max(256, Sk // 4))
        rep = Hq // Hkv
        q = (lambda x, *d: x.permute(*d))((x @ wq).reshape(B, Sq, Hq, Dh), 0, 2, 1, 3)
        k = (lambda x, n, axis: torch.repeat_interleave(x, n, dim=axis))(k_cache[:, :, Sk - W:, :], rep, axis=1)
        v = (lambda x, n, axis: torch.repeat_interleave(x, n, dim=axis))(v_cache[:, :, Sk - W:, :], rep, axis=1)
        scores = torch.einsum("bhqd,bhkd->bhqk", q, k) * (Dh ** -0.5)
        p = _softmax(scores, axis=-1)
        o = torch.einsum("bhqk,bhkd->bhqd", p, v)
        return (lambda x, *d: x.permute(*d))(o, 0, 2, 1, 3).reshape(B, Sq, Hq * Dh) @ wo

    def _B_ref(x, w1, b1, w2, b2):
        h = torch.einsum("bsd,df->bsf", x, w1) + b1
        h = _gelu(h)
        return torch.einsum("bsf,fd->bsd", h, w2) + b2

    x = A_x
    xn = _layernorm(x, axis=-1)
    s = _A_ref(xn, A_k_cache, A_v_cache, A_wq, A_wo)
    g = _silu(_B_ref(xn, B_w1, B_b1, B_w2, B_b2))
    return x + s * g
```

```python
import re

TRANS = ("v_exp_f32", "v_log_f32", "v_rcp_f32", "v_rsq_f32", "v_sqrt_f32", "v_sin_f32", "v_cos_f32")

def regs_of(tok):
    tok = tok.strip()
    tok = tok.lstrip("-")
    if tok.startswith("abs(") or tok.startswith("|"):
        tok = tok.replace("abs(", "").replace(")", "").replace("|", "")
    m = re.fullmatch(r"([vsa])(\d+)", tok)
    if m:
        return [(m.group(1), int(m.group(2)))]
    m = re.fullmatch(r"([vsa])\[(\d+):(\d+)\]", tok)
    if m:
        return [(m.group(1), i) for i in range(int(m.group(2)), int(m.group(3)) + 1)]
    if tok == "vcc":
        return [("s", 106), ("s", 107)]
    if tok == "vcc_lo": return [("s", 106)]
    if tok == "vcc_hi": return [("s", 107)]
    if tok == "exec":
        return [("s", 126), ("s", 127)]
    if tok == "m0":
        return [("s", 124)]
    return []

class Ins:
    def __init__(self, text):
        self.text = text
        t = text.split(";")[0].strip()
        self.label = t.endswith(":")
        self.directive = t.startswith(".") and not self.label
        parts = t.split(None, 1)
        self.op = parts[0] if parts else ""
        rest = parts[1] if len(parts) > 1 else ""
        qp = re.search(r"quad_perm:\[[^\]]*\]", rest)
        extra = ""
        if qp:
            extra = " quad_perm"
            rest = rest[:qp.start()] + rest[qp.end():]
        ops = [o.strip() for o in rest.split(",")] if rest else []
        self.mods = ""
        if ops:
            last = ops[-1].split(None, 1)
            if len(last) > 1:
                ops[-1] = last[0]
                self.mods = last[1]
        self.mods += extra
        self.ops = ops
        op = self.op
        self.is_valu = op.startswith("v_") and not op.startswith("v_mfma")
        self.is_mfma = op.startswith("v_mfma")
        self.is_vmem = op.startswith(("global_", "buffer_", "flat_", "scratch_"))
        self.is_ds = op.startswith("ds_")
        self.is_salu = op.startswith("s_") and not op.startswith(("s_load", "s_waitcnt", "s_nop", "s_barrier", "s_branch", "s_cbranch", "s_endpgm", "s_memrealtime", "s_memtime", "s_atomic", "s_sleep", "s_setprio"))
        self.is_dpp = ("_dpp" in op) or any(k in self.mods for k in ("row_", "quad_perm", "wave_"))
        self.is_trans = op.replace("_e32", "").replace("_e64", "") in TRANS
        self.is_permlane = op.startswith("v_permlane")
        self.is_rdlane = op.startswith(("v_readlane", "v_readfirstlane"))
        self.is_wrlane = op.startswith("v_writelane")
        dst, src = [], []
        R = [regs_of(o) for o in ops]
        if self.is_mfma:
            dst = R[0]; src = R[1] + R[2] + R[3]
            self.srcA = R[1]; self.srcB = R[2]; self.srcC = R[3]
        elif self.is_valu:
            if op.startswith("v_cmp"):
                dst = R[0]; src = sum(R[1:], [])
                if op.startswith("v_cmpx"): dst = dst + regs_of("exec")
            elif self.is_permlane:
                dst = R[0] + R[1]; src = R[0] + R[1]
            elif op.startswith(("v_add_co", "v_sub_co", "v_addc_co", "v_subb_co", "v_subrev_co")):
                dst = R[0] + R[1]; src = sum(R[2:], [])
            else:
                dst = R[0]; src = sum(R[1:], [])
                if op.startswith(("v_fmac", "v_dot2c", "v_writelane")) or self.is_dpp:
                    src = src + R[0]
                if op.startswith("v_cndmask") and len(ops) == 3:
                    src = src + regs_of("vcc")
        elif self.is_vmem:
            if "store" in op or ("atomic" in op and "sc0" not in self.mods):
                src = sum(R, [])
            elif "lds" in op or " lds" in (" " + self.mods):
                src = sum(R, []) + regs_of("m0")
            else:
                dst = R[0]; src = sum(R[1:], [])
        elif self.is_ds:
            if op.startswith(("ds_write", "ds_add_f32", "ds_max_f32", "ds_add_u32", "ds_min_f32")):
                src = sum(R, [])
            else:
                dst = R[0]; src = sum(R[1:], [])
        elif op.startswith("s_"):
            if op.startswith(("s_cmp", "s_cbranch", "s_branch", "s_waitcnt", "s_nop", "s_barrier", "s_endpgm", "s_sleep", "s_setprio", "s_bitcmp")):
                src = sum(R, [])
            else:
                dst = R[0] if R else []; src = sum(R[1:], [])
                if "saveexec" in op: dst = dst + regs_of("exec")
        self.dst = set(dst); self.src = set(src)
        self.states = 1
        if op == "s_nop":
            self.states = int(ops[0], 0) + 1
        if self.label or self.directive or op == "":
            self.states = 0
        self.passes = 0
        if self.is_mfma:
            if "16x16x32" in op or "16x16x16" in op: self.passes = 4
            elif "32x32x16" in op or "32x32x8" in op: self.passes = 8
            elif "4x4x4" in op: self.passes = 2
            else: self.passes = 16
    def wide_store(self):
        return (self.is_vmem and "store" in self.op and ("x4" in self.op or "x3" in self.op))

def need(prev, cur):
    n = 0
    vd = {r for r in prev.dst if r[0] in "va"}
    sd = {r for r in prev.dst if r[0] == "s"}
    if prev.is_valu:
        if vd & cur.src:
            if cur.is_mfma: n = max(n, 2)
            if cur.is_dpp: n = max(n, 2)
            if cur.is_permlane: n = max(n, 2)
            if cur.is_rdlane: n = max(n, 1)
            if prev.is_trans and cur.is_valu and not cur.is_trans: n = max(n, 1)
            if prev.is_trans and (cur.is_vmem or cur.is_ds or cur.is_mfma): n = max(n, 2)
        if sd & cur.src:
            if cur.is_valu or cur.is_mfma: n = max(n, 2)
            if cur.is_rdlane or cur.is_wrlane: n = max(n, 4)
            if cur.is_vmem: n = max(n, 5)
            if cur.op.startswith("s_"): n = max(n, 1)
        if ("s", 126) in sd:
            if cur.is_dpp: n = max(n, 5)
            if cur.is_permlane or cur.is_rdlane or cur.is_wrlane or cur.is_mfma: n = max(n, 4)
        if (("s", 106) in sd) and cur.op in ("s_cbranch_vccz", "s_cbranch_vccnz"): n = max(n, 1)
    if prev.is_mfma:
        p = prev.passes
        tab_use = {2: 5, 4: 8, 8: 12, 16: 20}[p]
        tab_c = {2: 4, 4: 6, 8: 10, 16: 18}[p]
        if cur.is_mfma:
            if vd & (set(cur.srcA) | set(cur.srcB)): n = max(n, tab_use)
            if vd & set(cur.srcC):
                if set(cur.srcC) == vd and cur.passes == p: n = max(n, 2 if p == 2 else 0)
                else: n = max(n, tab_c)
            elif vd & cur.dst: n = max(n, tab_use)
        else:
            if vd & (cur.src | cur.dst): n = max(n, tab_use)
        if cur.is_valu and (set(prev.srcC) & cur.dst):
            n = max(n, {2: 1, 4: 3, 8: 7, 16: 15}[p])
    if prev.is_salu and ("s", 124) in prev.dst and ("s", 124) in cur.src and cur.is_vmem:
        n = max(n, 1)
    if prev.wide_store() or (prev.is_ds and prev.op.startswith("ds_write") and False):
        if (prev.src & cur.dst) and any(r[0] == "v" for r in (prev.src & cur.dst)):
            n = max(n, 2)
    return n

class Asm:
    def __init__(self):
        self.ins = []
    def __call__(self, text):
        for line in text.split("\n"):
            line = line.strip()
            if not line: continue
            if line.startswith(";"):
                self.ins.append(Ins("")) ; self.ins[-1].text = line
                continue
            cur = Ins(line)
            if cur.states > 0 and cur.op != "s_nop":
                dist = 0; req = 0
                for prev in reversed(self.ins):
                    if dist >= 24: break
                    if prev.states == 0: continue
                    k = need(prev, cur)
                    if k > dist: req = max(req, k - dist)
                    dist += prev.states
                while req > 0:
                    k = min(req, 16)
                    self.ins.append(Ins(f"s_nop {k-1}"))
                    req -= k
            self.ins.append(cur)
    def text(self):
        out = []
        for i in self.ins:
            if i.label or i.directive or i.text.startswith(";"): out.append(i.text)
            else: out.append("    " + i.text)
        return "\n".join(out) + "\n"
```

```python
import sys
sys.path.insert(0, "work")
from asmlib import Asm
NAME = "recurrent_scan__sliding_block_cached__dense_activation_gelu__decode"
DIAG = "--diag" in sys.argv
OUT = [a for a in sys.argv[1:] if not a.startswith("--")][0]
def opt(name, default):
    for x in sys.argv:
        if x.startswith("--" + name + "="): return int(x.split("=")[1])
    return default
QGPOS = opt("qgpos", 3)

WS_Q = 0x10000
WS_H = 0x40000
WS_ML = 0x80000
WS_O = 0x100000
WS_S = 0x300000
WS_Y = 0x400000
WS_DIAG = 0x800000
L_WQ = 0x0000
L_W1 = 0x4000
L_XN = 0x6000
L_QS = 0x6400
L_MX = 0x6800
L_LS = 0x6810
L_FL = 0x6820
L_OR = 0x7000
LDS_BYTES = L_OR + 8 * 2560
SPIN = 1 << 18

a = Asm()
header = open("cdna_kernels/" + NAME + ".s.ref").read().split("; Override launch")[0]
vLANE, vI16, vQ4 = "v1", "v2", "v3"
vM = ["v4", "v5", "v6", "v7"]
K0, V0, QB0, G0, PA0, W0 = 16, 32, 48, 64, 80, 112
def vr(b, n=4): return f"v[{b}:{b+n-1}]"

def stamp(idx):
    if not DIAG: return
    a(f"s_memrealtime s[98:99]")
    a("s_waitcnt lgkmcnt(0)")
    a(f"v_writelane_b32 v128, s98, {idx}")
def diag_flush():
    if not DIAG: return
    a("s_mov_b64 exec, -1")
    a("s_lshl_b32 s7, s2, 3")
    a("s_add_u32 s7, s7, s5")
    a("s_lshl_b32 s7, s7, 8")
    a(f"s_add_u32 s7, s7, {WS_DIAG}")
    a("s_add_u32 s98, s14, s7")
    a("s_addc_u32 s99, s15, 0")
    a(f"v_lshlrev_b32 v129, 2, {vLANE}")
    a("global_store_dword v129, v128, s[98:99]")
def bf16_round_pair(dlo, dhi, slo, shi, tmp):
    a(f"v_cvt_pk_bf16_f32 {tmp}, {slo}, {shi}")
    a(f"v_lshlrev_b32 {dlo}, 16, {tmp}")
    a(f"v_and_b32 {dhi}, 0xffff0000, {tmp}")
def bf16_round(d, s):
    a(f"v_cvt_pk_bf16_f32 {d}, {s}, {s}")
    a(f"v_and_b32 {d}, 0xffff0000, {d}")
def dpp(op, d, s0, s1, ctrl):
    if op == "v_mov_b32": a(f"v_mov_b32_dpp {d}, {s0} {ctrl} row_mask:0xf bank_mask:0xf")
    else: a(f"{op}_dpp {d}, {s0}, {s1} {ctrl} row_mask:0xf bank_mask:0xf")
def row_allreduce(op, x):
    for r in (8, 4, 2, 1): dpp(op, x, x, x, f"row_ror:{r}")
def wave_allreduce(op, x, t):
    row_allreduce(op, x)
    a(f"v_mov_b32 {t}, {x}")
    a(f"v_permlane16_swap_b32 {x}, {t}")
    a(f"{op} {x}, {x}, {t}")
    a(f"v_mov_b32 {t}, {x}")
    a(f"v_permlane32_swap_b32 {x}, {t}")
    a(f"{op} {x}, {x}, {t}")
def sbase(dst, src, off_sreg):
    a(f"s_add_u32 s{dst}, s{src}, {off_sreg}")
    a(f"s_addc_u32 s{dst+1}, s{src+1}, 0")
def tagcheck(regs, t0="v12", t1="v13"):
    a(f"v_xor_b32 {t0}, s6, v{regs[0]}")
    for r in regs[1:]:
        a(f"v_xor_b32 {t1}, s6, v{r}")
        a(f"v_or_b32 {t0}, {t0}, {t1}")
    a(f"v_cmp_ne_u32 vcc, 0, {t0}")

a(f"{NAME}_kernel:")
if DIAG: a("s_memrealtime s[100:101]")
a("s_cmp_ge_u32 s2, 256")
a("s_cbranch_scc1 L_end")
a("s_load_dwordx16 s[16:31], s[0:1], 0")
a("s_load_dwordx4 s[8:11], s[0:1], 64")
a("s_load_dwordx2 s[12:13], s[0:1], 80")
a("s_load_dwordx2 s[14:15], s[0:1], 96")
a(f"v_and_b32 {vLANE}, 63, v0")
a("v_lshrrev_b32 v8, 6, v0")
a(f"v_and_b32 {vI16}, 15, v0")
a(f"v_bfe_u32 {vQ4}, v0, 4, 2")
a("v_readfirstlane_b32 s5, v8")
a("s_and_b32 s3, s2, 7")
a("s_lshr_b32 s4, s2, 3")
if DIAG: a("v_mov_b32 v128, 0")
a(f"v_bfe_u32 v8, {vLANE}, 1, 3")
a(f"v_and_b32 v9, 1, {vLANE}")
a("v_lshlrev_b32 v9, 4, v9")
a(f"v_lshl_add_u32 v9, {vQ4}, 5, v9")
a("v_lshl_add_u32 v10, v8, 13, v9")
a("v_xor_b32 v11, 0x8000, v10")
a("v_add_u32 v11, 0x10000, v11")
a("s_and_b32 s32, s5, 1")
a("s_lshl_b32 s32, s32, 2")
a("v_xor_b32 v12, s32, v8")
a("v_mul_u32_u24 v12, 3584, v12")
a("v_add_u32 v12, v12, v9")
a(f"v_lshlrev_b32 v13, 7, {vI16}")
a("v_and_b32 v13, 0x700, v13")
a(f"v_and_b32 v14, 1, {vI16}")
a("v_lshl_add_u32 v13, v14, 6, v13")
a(f"v_lshl_add_u32 v13, {vQ4}, 4, v13")
a(f"v_lshlrev_b32 v15, 9, {vQ4}")
a(f"v_lshl_add_u32 v15, {vI16}, 4, v15")
a(f"v_lshlrev_b32 v14, 4, {vLANE}")
a("s_lshl_b32 s96, s3, 5")
a("s_add_u32 s96, s96, s4")
a("s_lshr_b32 s32, s4, 2")
a("s_lshl_b32 s32, s32, 7")
a("s_lshl_b32 s33, s3, 10")
a("s_add_u32 s32, s32, s33")
a("s_and_b32 s97, s4, 3")
a("s_lshl_b32 s33, s97, 20")
a("s_add_u32 s32, s32, s33")
a("s_lshl_b32 s33, s5, 17")
a("s_add_u32 s32, s32, s33")
a("s_min_u32 s34, s96, 223")
a("s_lshr_b32 s35, s34, 3")
a("s_lshl_b32 s35, s35, 7")
a("s_and_b32 s36, s34, 7")
a("s_lshl_b32 s36, s36, 3")
a("s_add_u32 s36, s36, s5")
a(f"s_mul_i32 s36, s36, {8*3584}")
a("s_add_u32 s36, s36, s35")
a("s_lshl_b32 s37, s3, 23")
a("s_lshl_b32 s38, s4, 15")
a("s_add_u32 s37, s37, s38")
a("s_lshl_b32 s38, s5, 12")
a("s_add_u32 s37, s37, s38")
a("s_add_u32 s37, s37, 0x700000")
a("s_lshl_b32 s39, s5, 11")
a("s_lshl_b32 s40, s5, 10")
a(f"s_add_u32 s40, s40, {L_W1}")
a("s_waitcnt lgkmcnt(0)")
a("s_load_dword s6, s[14:15], 0")
a("s_cmp_lg_u32 s5, 0")
a("s_cbranch_scc1 L_nox")
a(f"global_load_dwordx4 {vr(W0)}, v14, s[16:17]")
a("L_nox:")
sbase(22, 22, "s32")
a("s_mov_b32 m0, s39")
sbase(28, 28, "s36")
a("global_load_lds_dwordx4 v10, s[22:23] nt")
a("s_add_u32 s39, s39, 1024")
a("s_mov_b32 m0, s39")
sbase(18, 18, "s37")
a("global_load_lds_dwordx4 v11, s[22:23] nt")
a("s_mov_b32 m0, s40")
sbase(20, 20, "s37")
a("s_cmp_lt_u32 s96, 224")
a("s_cbranch_scc1 L_w1ok")
a("s_mov_b64 exec, 1")
a("L_w1ok:")
a("global_load_lds_dwordx4 v12, s[28:29] nt")
a("s_mov_b64 exec, -1")
for kh in range(2):
    for hf in range(2):
        a(f"global_load_dwordx4 {vr(K0+8*kh+4*hf)}, v13, s[18:19] offset:{kh*2048+hf*128} nt")
if DIAG: a("v_writelane_b32 v128, s100, 0")
stamp(1)
a(f"v_and_b32 v8, 1, {vI16}")
a("v_cmp_eq_u32 vcc, 1, v8")
a("v_mov_b32 v9, 0xffff")
a("v_mov_b32 v10, 0xffff0000")
a("v_cndmask_b32 v9, v9, v10, vcc")
a("s_mov_b64 s[92:93], vcc")
a(f"v_bfe_u32 v8, {vI16}, 1, 2")
for d in range(4):
    a(f"v_cmp_eq_u32 vcc, {d}, v8")
    a(f"v_cndmask_b32 {vM[d]}, 0, v9, vcc")
a("s_mov_b32 s94, 0")
a("s_mov_b32 s95, -1")
a("s_waitcnt lgkmcnt(0)")
a("s_mul_i32 s6, s6, 0x9E3779B1")
a("s_add_u32 s6, s6, 0x7F4A7C15")
a("s_cmp_lg_u32 s5, 0")
a("s_cbranch_scc1 L_noln")
a("s_waitcnt vmcnt(7)")
X = [f"v{V0+i}" for i in range(8)]
for d in range(4):
    a(f"v_lshlrev_b32 {X[2*d]}, 16, v{W0+d}")
    a(f"v_and_b32 {X[2*d+1]}, 0xffff0000, v{W0+d}")
a(f"v_add_f32 v8, {X[0]}, {X[1]}")
a(f"v_add_f32 v9, {X[2]}, {X[3]}")
a(f"v_add_f32 v10, {X[4]}, {X[5]}")
a(f"v_add_f32 v11, {X[6]}, {X[7]}")
a("v_add_f32 v8, v8, v9")
a("v_add_f32 v10, v10, v11")
a("v_add_f32 v8, v8, v10")
wave_allreduce("v_add_f32", "v8", "v9")
a("v_mul_f32 v8, 0x3b000000, v8")
D = [f"v{V0+8+i}" for i in range(8)]
for i in range(8): a(f"v_sub_f32 {D[i]}, {X[i]}, v8")
a(f"v_mul_f32 v10, {D[0]}, {D[0]}")
for i in range(1, 8): a(f"v_fmac_f32 v10, {D[i]}, {D[i]}")
wave_allreduce("v_add_f32", "v10", "v9")
a("v_mul_f32 v10, 0x3b000000, v10")
bf16_round("v10", "v10")
a("v_add_f32 v10, 0x3727c5ac, v10")
bf16_round("v10", "v10")
a("v_sqrt_f32 v10, v10")
bf16_round("v10", "v10")
a("v_rcp_f32 v10, v10")
bf16_round("v8", "v8")
for i in range(8): a(f"v_sub_f32 {D[i]}, {X[i]}, v8")
for d in range(4): bf16_round_pair(D[2*d], D[2*d+1], D[2*d], D[2*d+1], "v9")
for i in range(8): a(f"v_mul_f32 {D[i]}, {D[i]}, v10")
for d in range(4): a(f"v_cvt_pk_bf16_f32 v{W0+d}, {D[2*d]}, {D[2*d+1]}")
a(f"ds_write_b128 v14, {vr(W0)} offset:{L_XN}")
a("v_mov_b32 v8, 0")
for i in range(4): a(f"v_mov_b32 v{116+i}, 0xff800000")
for i in range(4): a(f"v_mov_b32 v{120+i}, 0")
a("s_mov_b64 exec, 1")
a(f"ds_write_b128 v8, v[116:119] offset:{L_MX}")
a(f"ds_write_b128 v8, v[120:123] offset:{L_LS}")
a(f"ds_write_b32 v8, v120 offset:{L_FL}")
a("s_mov_b64 exec, -1")
a("L_noln:")
a("s_and_b32 s32, s5, 3")
a("s_lshl_b32 s32, s32, 8")
a(f"v_lshlrev_b32 v8, 10, {vQ4}")
a(f"v_lshl_add_u32 v8, {vI16}, 3, v8")
a("v_add_u32 v8, s32, v8")
a(f"v_and_b32 v9, 1, {vQ4}")
a("v_lshlrev_b32 v9, 7, v9")
a("v_add_u32 v10, v8, v9")
a("v_xor_b32 v9, 128, v9")
a("v_add_u32 v11, v8, v9")
a(f"v_lshlrev_b32 v12, 4, {vQ4}")
a(f"v_lshlrev_b32 v14, 3, {vLANE}")
a("s_cmp_ge_u32 s5, 4")
a("s_cbranch_scc1 L_B0b")
a("s_lshl_b32 s32, s97, 8")
a("v_add_u32 v12, s32, v12")
a("s_lshl_b32 s32, s3, 14")
a("s_lshl_b32 s33, s97, 12")
a("s_add_u32 s32, s32, s33")
a("s_lshr_b32 s33, s4, 2")
a("s_lshl_b32 s33, s33, 9")
a("s_add_u32 s32, s32, s33")
a("s_lshl_b32 s33, s5, 7")
a("s_add_u32 s32, s32, s33")
a(f"s_add_u32 s32, s32, {WS_Q}")
sbase(42, 14, "s32")
a("s_lshl_b32 s32, s3, 14")
a("s_lshl_b32 s33, s5, 10")
a("s_add_u32 s32, s32, s33")
a(f"s_add_u32 s32, s32, {WS_Q + 4096}")
sbase(44, 14, "s32")
a("s_add_u32 s46, s44, 8192")
a("s_addc_u32 s47, s45, 0")
a("s_lshl_b32 s32, s96, 14")
a("s_lshl_b32 s33, s5, 8")
a("s_add_u32 s32, s32, s33")
sbase(24, 24, "s32")
a("s_waitcnt vmcnt(4) lgkmcnt(0)")
stamp(2)
a("s_barrier")
stamp(3)
for t in range(4):
    a(f"ds_read_b128 {vr(QB0+4*t)}, v12 offset:{L_XN + t*64}")
    b = PA0 + 4*t
    a(f"ds_read_b64_tr_b16 v[{b}:{b+1}], v10 offset:{L_WQ + t*4096}")
    a(f"ds_read_b64_tr_b16 v[{b+2}:{b+3}], v11 offset:{L_WQ + t*4096}")
a("v_mov_b32 v9, s6")
for t in range(4):
    a(f"s_waitcnt lgkmcnt({9-3*t})")
    c = "0" if t == 0 else "v[124:127]"
    a(f"v_mfma_f32_16x16x32_bf16 v[124:127], {vr(QB0+4*t)}, {vr(PA0+4*t)}, {c}")
a(f"v_lshlrev_b32 v10, 4, {vLANE}")
a(f"v_lshlrev_b32 v11, 12, {vQ4}")
a(f"v_lshl_add_u32 v11, {vI16}, 4, v11")
a("v_mov_b32 v8, v124")
a("s_mov_b64 exec, 0xffff")
a("global_store_dwordx2 v14, v[8:9], s[42:43] sc1")
a("s_mov_b64 exec, -1")
stamp(4)
def vload(n):
    kh, aa = n >> 1, n & 1
    a(f"global_load_dwordx4 {vr(V0+4*n)}, v15, s[20:21] offset:{kh*2048+aa*256} nt")
def qgather():
    a(f"global_load_dwordx4 {vr(G0)}, v10, s[44:45] offset:-4096 sc1")
    a(f"global_load_dwordx4 {vr(G0+4)}, v10, s[44:45] sc1")
    a(f"global_load_dwordx4 {vr(G0+8)}, v10, s[46:47] offset:-4096 sc1")
    a(f"global_load_dwordx4 {vr(G0+12)}, v10, s[46:47] sc1")
for n in range(QGPOS): vload(n)
qgather()
for n in range(QGPOS, 4): vload(n)
for rg in range(4):
    a(f"global_load_dwordx4 {vr(W0+4*rg)}, v11, s[24:25] offset:{rg*1024} nt")
stamp(5)
a(f"s_mov_b32 s100, {SPIN}")
a(f"s_waitcnt vmcnt({4 + 4 - QGPOS})")
a("s_branch L_qchk")
a("L_qpoll:")
qgather()
a("s_waitcnt vmcnt(0)")
a("L_qchk:")
tagcheck([G0 + 1 + 2*n for n in range(8)])
a("s_sub_u32 s100, s100, 1")
a("s_cbranch_scc1 L_qgot")
a("s_cbranch_vccnz L_qpoll")
a("L_qgot:")
a(f"v_add_f32 v8, v{G0}, v{G0+4}")
a(f"v_add_f32 v9, v{G0+8}, v{G0+12}")
a(f"v_add_f32 v12, v{G0+2}, v{G0+6}")
a(f"v_add_f32 v13, v{G0+10}, v{G0+14}")
a("v_add_f32 v8, v8, v9")
a("v_add_f32 v12, v12, v13")
a("s_lshl_b32 s32, s5, 8")
a(f"v_lshl_add_u32 v9, {vLANE}, 2, s32")
a("v_cvt_pk_bf16_f32 v8, v8, v12")
a(f"ds_write_b32 v9, v8 offset:{L_QS}")
if DIAG:
    a(f"s_sub_u32 s101, {SPIN}, s100")
    a("v_writelane_b32 v128, s101, 20")
a("s_branch L_B1")
a("L_B0b:")
a("s_and_b32 s33, s96, 7")
a("s_lshl_b32 s32, s33, 7")
a("v_add_u32 v12, s32, v12")
a("s_mul_i32 s32, s33, 14336")
a("s_lshr_b32 s33, s96, 3")
a("s_lshl_b32 s33, s33, 9")
a("s_add_u32 s32, s32, s33")
a("s_and_b32 s33, s5, 3")
a("s_lshl_b32 s33, s33, 7")
a("s_add_u32 s32, s32, s33")
a("s_cmp_lt_u32 s96, 224")
a("s_cselect_b32 s32, s32, 0x20000")
a(f"s_add_u32 s32, s32, {WS_H}")
sbase(42, 14, "s32")
a("s_mul_i32 s7, s96, 7")
a("s_and_b32 s97, s96, 1")
a("s_sub_u32 s7, s7, s97")
a("s_lshl_b32 s32, s7, 3")
a(f"s_add_u32 s32, s32, {WS_H}")
sbase(44, 14, "s32")
a("s_lshl_b32 s32, s7, 10")
a("s_and_b32 s33, s5, 3")
a("s_lshl_b32 s33, s33, 8")
a("s_add_u32 s32, s32, s33")
sbase(8, 8, "s32")
a("s_lshl_b32 s32, s7, 1")
sbase(30, 30, "s32")
a("s_load_dwordx4 s[48:51], s[30:31], 0")
a("s_waitcnt vmcnt(4) lgkmcnt(0)")
stamp(2)
a("s_barrier")
stamp(3)
for t in range(2):
    a(f"ds_read_b128 {vr(QB0+4*t)}, v12 offset:{L_XN + t*64}")
    b = PA0 + 4*t
    a(f"ds_read_b64_tr_b16 v[{b}:{b+1}], v10 offset:{L_W1 + t*4096}")
    a(f"ds_read_b64_tr_b16 v[{b+2}:{b+3}], v11 offset:{L_W1 + t*4096}")
a("v_mov_b32 v9, s6")
for t in range(2):
    a(f"s_waitcnt lgkmcnt({3-3*t})")
    c = "0" if t == 0 else "v[124:127]"
    a(f"v_mfma_f32_16x16x32_bf16 v[124:127], {vr(QB0+4*t)}, {vr(PA0+4*t)}, {c}")
a(f"v_and_b32 v10, 7, {vI16}")
a("v_mul_u32_u24 v10, 14336, v10")
a(f"v_lshl_add_u32 v10, {vQ4}, 3, v10")
a(f"v_max_u32 v11, s97, {vQ4}")
a("s_add_u32 s33, s97, 2")
a(f"v_min_u32 v12, s33, {vQ4}")
a("v_lshlrev_b32 v11, 10, v11")
a("v_lshlrev_b32 v12, 10, v12")
a(f"v_lshl_add_u32 v11, {vI16}, 4, v11")
a(f"v_lshl_add_u32 v12, {vI16}, 4, v12")
a("v_add_u32 v12, 4096, v12")
a("v_mov_b32 v8, v124")
a("s_mov_b64 exec, 0xffff")
a("global_store_dwordx2 v14, v[8:9], s[42:43] sc1")
a("s_mov_b64 exec, -1")
stamp(4)
for n in range(4): vload(n)
HG = W0 + 8
def hgather():
    a(f"global_load_dwordx2 v[{HG}:{HG+1}], v10, s[44:45] sc1")
    a(f"global_load_dwordx2 v[{HG+2}:{HG+3}], v10, s[44:45] offset:32 sc1")
hgather()
a(f"global_load_dwordx4 {vr(W0)}, v11, s[8:9] nt")
a(f"global_load_dwordx4 {vr(W0+4)}, v12, s[8:9] nt")
a("v_mov_b32 v124, v10")
stamp(5)
a("s_waitcnt vmcnt(9)")
a("L_B1:")
a(f"v_lshrrev_b32 v8, 3, {vI16}")
a("v_lshlrev_b32 v14, 2, v8")
a("v_lshlrev_b32 v8, 8, v8")
a(f"v_lshl_add_u32 v8, {vQ4}, 4, v8")
a(f"v_and_b32 v9, 1, {vI16}")
a("v_lshl_add_u32 v8, v9, 6, v8")
a("s_waitcnt lgkmcnt(0)")
stamp(6)
a("s_barrier")
for p in range(2):
    for hf in range(2):
        a(f"ds_read_b128 {vr(QB0+8*p+4*hf)}, v8 offset:{L_QS + p*512 + hf*128}")
a("s_mov_b32 s32, 0x3db504f3")
a("s_mov_b32 s33, 0x3fb8aa3b")
a("s_mov_b32 s34, 0x01010101")
a("s_mov_b32 s35, 0x01010101")
DD = lambda p, kh: G0 + 8*p + 4*kh
for hf in range(2):
    a(f"s_waitcnt lgkmcnt({1-hf})") if False else None
    for p in range(2):
        if hf == 0: a(f"s_waitcnt lgkmcnt({3-2*p})")
        else: a(f"s_waitcnt lgkmcnt({2-2*p})") if p == 0 else a("s_waitcnt lgkmcnt(0)")
        for kh in range(2):
            c = "0" if hf == 0 else vr(DD(p, kh))
            a(f"v_mfma_f32_16x16x32_bf16 {vr(DD(p,kh))}, {vr(K0+8*kh+4*hf)}, {vr(QB0+8*p+4*hf)}, {c}")
S = [[f"v{K0+4*p+n}" for n in range(4)] for p in range(2)]
for p in range(2):
    for kh in range(2):
        for aa in range(2):
            d = DD(p, kh) + 2*aa
            a(f"v_cndmask_b32 {S[p][kh*2+aa]}, v{d}, v{d+1}, s[92:93]")
for p in range(2):
    for n in range(4):
        dpp("v_add_f32", S[p][n], S[p][n], S[p][n], "quad_perm:[1,0,3,2]")
for p in range(2):
    for r in (0, 2):
        bf16_round_pair(S[p][r], S[p][r+1], S[p][r], S[p][r+1], "v9")
        a(f"v_mul_f32 {S[p][r]}, s32, {S[p][r]}")
        a(f"v_mul_f32 {S[p][r+1]}, s32, {S[p][r+1]}")
        bf16_round_pair(S[p][r], S[p][r+1], S[p][r], S[p][r+1], "v9")
    a(f"v_max3_f32 v{10+p}, {S[p][0]}, {S[p][1]}, {S[p][2]}")
    a(f"v_max_f32 v{10+p}, v{10+p}, {S[p][3]}")
a("s_mov_b64 exec, s[34:35]")
a(f"ds_max_f32 v14, v10 offset:{L_MX}")
a(f"ds_max_f32 v14, v11 offset:{L_MX+8}")
a("s_mov_b64 exec, -1")
a("s_mul_i32 s36, s5, 2560")
a(f"v_mul_u32_u24 v8, 320, {vQ4}")
a(f"v_lshl_add_u32 v8, {vI16}, 4, v8")
a("v_add_u32 v8, s36, v8")
a("s_waitcnt lgkmcnt(0)")
stamp(7)
a("s_barrier")
a(f"ds_read_b32 v10, v14 offset:{L_MX}")
a(f"ds_read_b32 v11, v14 offset:{L_MX+8}")
a("s_lshr_b32 s36, s5, 1")
a("s_mul_i32 s36, s36, 640")
a("s_and_b32 s37, s5, 1")
a("s_lshl_b32 s37, s37, 7")
a("s_add_u32 s36, s36, s37")
a(f"v_bfe_u32 v9, {vLANE}, 2, 1")
a("v_mul_u32_u24 v9, 320, v9")
a(f"v_lshrrev_b32 v12, 3, {vLANE}")
a("v_lshl_add_u32 v9, v12, 4, v9")
a(f"v_and_b32 v12, 3, {vLANE}")
a("v_lshl_add_u32 v9, v12, 2, v9")
a("v_add_u32 v9, s36, v9")
a("s_waitcnt lgkmcnt(0)")
a("v_mul_f32 v10, s33, v10")
a("v_mul_f32 v11, s33, v11")
for p in range(2):
    for r in range(4): a(f"v_fma_f32 {S[p][r]}, {S[p][r]}, s33, -v{10+p}")
    for r in range(4): a(f"v_exp_f32 {S[p][r]}, {S[p][r]}")
for p in range(2):
    for r in range(4):
        a(f"v_cvt_pk_bf16_f32 v{24+4*p+r}, {S[p][r]}, {S[p][r]}")
        for d in range(4):
            a(f"v_and_b32 v{PA0+16*p+4*r+d}, v{24+4*p+r}, {vM[d]}")
stamp(8)
a("s_waitcnt vmcnt(4)")
ACC = [QB0, QB0 + 4]
for r in range(4):
    for p in range(2):
        c = "0" if r == 0 else vr(ACC[p])
        a(f"v_mfma_f32_16x16x32_bf16 {vr(ACC[p])}, {vr(PA0+16*p+4*r)}, {vr(V0+4*r)}, {c}")
for p in range(2):
    a(f"v_add_f32 v12, {S[p][0]}, {S[p][1]}")
    a(f"v_add_f32 v13, {S[p][2]}, {S[p][3]}")
    a(f"v_add_f32 v{10+p}, v12, v13")
a("s_mov_b64 exec, s[34:35]")
a(f"ds_add_f32 v14, v10 offset:{L_LS}")
a(f"ds_add_f32 v14, v11 offset:{L_LS+8}")
a("s_mov_b64 exec, -1")
a(f"v_lshlrev_b32 v10, 12, {vQ4}")
a(f"v_lshl_add_u32 v10, {vI16}, 3, v10")
a("s_lshl_b32 s32, s3, 17")
a("s_lshl_b32 s33, s5, 14")
a("s_add_u32 s32, s32, s33")
for p in range(2):
    a(f"ds_write_b128 v8, {vr(ACC[p])} offset:{L_OR + p*1280}")
a("s_lshl_b32 s33, s4, 7")
a("s_add_u32 s32, s32, s33")
a(f"s_add_u32 s32, s32, {WS_O}")
sbase(36, 14, "s32")
a("v_mov_b32 v25, s6")
a("s_waitcnt lgkmcnt(0)")
stamp(9)
a("s_barrier")
for w in range(8):
    a(f"ds_read_b32 v{16+w}, v9 offset:{L_OR + w*2560}")
a(f"v_and_b32 v11, 1, {vQ4}")
a(f"v_lshlrev_b32 v11, 5, v11")
a(f"v_lshrrev_b32 v12, 1, {vQ4}")
a("v_lshl_add_u32 v11, v12, 4, v11")
a(f"v_lshl_add_u32 v11, {vI16}, 6, v11")
a("s_waitcnt lgkmcnt(4)")
a("v_add_f32 v16, v16, v17")
a("v_add_f32 v18, v18, v19")
a("s_waitcnt lgkmcnt(0)")
a("v_add_f32 v20, v20, v21")
a("v_add_f32 v22, v22, v23")
a("v_add_f32 v16, v16, v18")
a("v_add_f32 v20, v20, v22")
a("v_add_f32 v24, v16, v20")
a("global_store_dwordx2 v10, v[24:25], s[36:37] sc1")
a("s_and_b32 s32, s5, 3")
a("s_lshl_b32 s32, s32, 10")
a("s_lshl_b32 s33, s96, 12")
a("s_add_u32 s32, s32, s33")
sbase(38, 14, "s32")
def vec_publish(acc, base):
    a(f"v_cndmask_b32 v16, v{acc}, v{acc+2}, s[94:95]")
    a(f"v_cndmask_b32 v18, v{acc+1}, v{acc+3}, s[94:95]")
    a("v_mov_b32 v17, s6")
    a("v_mov_b32 v19, s6")
    a(f"global_store_dwordx4 v11, v[16:19], {base} sc1")
a("s_cmp_lt_u32 s5, 4")
a("s_cbranch_scc1 L_wo")
a("s_cmp_lg_u32 s5, 7")
a("s_cbranch_scc1 L_noml")
a(f"v_lshlrev_b32 v12, 2, {vLANE}")
a(f"ds_read_b32 v20, v12 offset:{L_MX}")
a(f"ds_read_b32 v22, v12 offset:{L_LS}")
a("v_mov_b32 v21, s6")
a("v_mov_b32 v23, s6")
a(f"v_lshlrev_b32 v12, 9, {vLANE}")
a("s_lshl_b32 s32, s3, 11")
a("s_lshl_b32 s33, s4, 4")
a("s_add_u32 s32, s32, s33")
a(f"s_add_u32 s32, s32, {WS_ML}")
sbase(42, 14, "s32")
a("s_waitcnt lgkmcnt(0)")
a("s_mov_b64 exec, 0xf")
a("global_store_dwordx4 v12, v[20:23], s[42:43] sc1")
a("s_mov_b64 exec, -1")
a("L_noml:")
stamp(10)
a("v_mov_b32 v10, v124")
a(f"s_mov_b32 s100, {SPIN}")
a("v_mov_b32 v26, s48")
a("v_mov_b32 v27, s49")
a("v_cndmask_b32 v26, v26, v27, s[94:95]")
a("v_mov_b32 v27, s50")
a("v_mov_b32 v28, s51")
a("v_cndmask_b32 v27, v27, v28, s[94:95]")
a(f"v_and_b32 v28, 1, {vQ4}")
a("v_cmp_eq_u32 vcc, 1, v28")
for rg in range(2):
    a(f"v_lshlrev_b32 v28, 16, v{26+rg}")
    a(f"v_and_b32 v{26+rg}, 0xffff0000, v{26+rg}")
    a(f"v_cndmask_b32 v{26+rg}, v28, v{26+rg}, vcc")
a("s_waitcnt vmcnt(1)")
a("s_branch L_hchk")
a("L_hpoll:")
hgather()
a("s_waitcnt vmcnt(0)")
a("L_hchk:")
tagcheck([HG+1, HG+3])
a("s_sub_u32 s100, s100, 1")
a("s_cbranch_scc1 L_hgot")
a("s_cbranch_vccnz L_hpoll")
a("L_hgot:")
H = [f"v{HG}", f"v{HG+2}"]
for ctrl in ("quad_perm:[1,0,3,2]", "quad_perm:[2,3,0,1]", "row_half_mirror"):
    for rg in range(2): dpp("v_add_f32", H[rg], H[rg], H[rg], ctrl)
a("v_mov_b32 v30, 0x3d372713")
for rg in range(2):
    h = H[rg]; t = f"v{28+rg}"
    bf16_round(h, h)
    a(f"v_add_f32 {h}, {h}, v{26+rg}")
    bf16_round(h, h)
    a(f"v_mul_f32 {t}, {h}, {h}")
    a(f"v_fma_f32 {t}, {t}, v30, 1.0")
    a(f"v_mul_f32 {t}, {t}, {h}")
    a(f"v_mul_f32 {t}, 0xc0135761, {t}")
    a(f"v_exp_f32 {t}, {t}")
    a(f"v_add_f32 {t}, 1.0, {t}")
    a(f"v_rcp_f32 {t}, {t}")
    a(f"v_mul_f32 {h}, {h}, {t}")
a("s_sub_u32 s32, s97, 1")
a(f"v_cmp_eq_u32 vcc, s32, {vQ4}")
a(f"v_cndmask_b32 {H[0]}, {H[0]}, 0, vcc")
a("s_add_u32 s32, s97, 3")
a(f"v_cmp_eq_u32 vcc, s32, {vQ4}")
a(f"v_cndmask_b32 {H[1]}, {H[1]}, 0, vcc")
for rg in range(2):
    a(f"v_cvt_pk_bf16_f32 {H[rg]}, {H[rg]}, {H[rg]}")
    for d in range(4): a(f"v_and_b32 v{PA0+4*rg+d}, {H[rg]}, {vM[d]}")
a(f"v_mfma_f32_16x16x32_bf16 v[124:127], {vr(PA0)}, {vr(W0)}, 0")
a(f"v_mfma_f32_16x16x32_bf16 v[124:127], {vr(PA0+4)}, {vr(W0+4)}, v[124:127]")
a(f"s_add_u32 s42, s38, {WS_Y}")
a("s_addc_u32 s43, s39, 0")
vec_publish(124, "s[42:43]")
stamp(11)
a("s_cmp_eq_u32 s5, 5")
a("s_cbranch_scc1 L_final")
diag_flush()
a("s_endpgm")
a("L_wo:")
stamp(10)
a("s_lshl_b32 s32, s3, 2")
a("s_lshr_b32 s33, s4, 3")
a("s_add_u32 s32, s32, s33")
a("s_lshl_b32 s32, s32, 9")
a(f"s_add_u32 s32, s32, {WS_ML}")
sbase(42, 14, "s32")
a("s_lshl_b32 s32, s96, 12")
a(f"s_add_u32 s32, s32, {WS_O}")
sbase(44, 14, "s32")
a(f"v_lshrrev_b32 v8, 1, {vI16}")
a("v_lshlrev_b32 v9, 4, v8")
a("v_lshlrev_b32 v10, 7, v8")
a(f"v_lshl_add_u32 v10, {vQ4}, 5, v10")
a(f"v_and_b32 v8, 1, {vI16}")
a("v_lshl_add_u32 v10, v8, 4, v10")
a(f"s_mov_b32 s100, {SPIN}")
a("s_mov_b32 s33, 0x3fb8aa3b")
ML0, OG0 = 16, 32
a("L_opoll:")
for u in range(4):
    a(f"global_load_dwordx4 {vr(ML0+4*u)}, v9, s[42:43] offset:{u*128} sc1")
for u in range(4):
    a(f"global_load_dwordx4 {vr(OG0+4*u)}, v10, s[44:45] offset:{u*1024} sc1")
a("s_waitcnt vmcnt(0)")
tagcheck([ML0 + 1 + 2*n for n in range(16)])
a("s_sub_u32 s100, s100, 1")
a("s_cbranch_scc1 L_ogot")
a("s_cbranch_vccnz L_opoll")
a("L_ogot:")
a("v_mov_b32 v8, 0")
a("v_mov_b32 v14, 1")
a(f"ds_write_b32 v8, v14 offset:{L_FL}")
stamp(11)
if DIAG:
    a(f"s_sub_u32 s101, {SPIN}, s100")
    a("v_writelane_b32 v128, s101, 21")
a(f"v_max3_f32 v12, v{ML0}, v{ML0+4}, v{ML0+8}")
a(f"v_max_f32 v12, v12, v{ML0+12}")
for r in (8, 4, 2): dpp("v_max_f32", "v12", "v12", "v12", f"row_ror:{r}")
for u in range(4):
    a(f"v_sub_f32 v{ML0+4*u}, v{ML0+4*u}, v12")
    a(f"v_mul_f32 v{ML0+4*u}, s33, v{ML0+4*u}")
for u in range(4): a(f"v_exp_f32 v{ML0+4*u}, v{ML0+4*u}")
a(f"v_mul_f32 v14, v{ML0}, v{ML0+2}")
a(f"v_mul_f32 v12, v{ML0}, v{OG0}")
a(f"v_mul_f32 v13, v{ML0}, v{OG0+2}")
for u in range(1, 4):
    a(f"v_fmac_f32 v14, v{ML0+4*u}, v{ML0+4*u+2}")
    a(f"v_fmac_f32 v12, v{ML0+4*u}, v{OG0+4*u}")
    a(f"v_fmac_f32 v13, v{ML0+4*u}, v{OG0+4*u+2}")
for r in (8, 4, 2):
    for x in ("v14", "v12", "v13"): dpp("v_add_f32", x, x, x, f"row_ror:{r}")
a("v_rcp_f32 v14, v14")
a("v_mul_f32 v12, v12, v14")
a("v_mul_f32 v13, v13, v14")
a("v_cvt_pk_bf16_f32 v12, v12, v12")
a("v_cvt_pk_bf16_f32 v13, v13, v13")
dpp("v_mov_b32", "v48", "v12", None, "quad_perm:[0,0,2,2]")
dpp("v_mov_b32", "v49", "v13", None, "quad_perm:[0,0,2,2]")
dpp("v_mov_b32", "v50", "v12", None, "quad_perm:[1,1,3,3]")
dpp("v_mov_b32", "v51", "v13", None, "quad_perm:[1,1,3,3]")
for rg in range(4):
    for d in range(4): a(f"v_and_b32 v{PA0+4*rg+d}, v{48+rg}, {vM[d]}")
for rg in range(4):
    c = "0" if rg == 0 else "v[52:55]"
    a(f"v_mfma_f32_16x16x32_bf16 v[52:55], {vr(PA0+4*rg)}, {vr(W0+4*rg)}, {c}")
a(f"s_add_u32 s42, s38, {WS_S}")
a("s_addc_u32 s43, s39, 0")
vec_publish(52, "s[42:43]")
stamp(12)
diag_flush()
a("s_endpgm")
a("L_final:")
a("s_lshl_b32 s32, s96, 4")
a(f"s_add_u32 s33, s32, {WS_Y}")
sbase(42, 14, "s33")
a(f"s_add_u32 s33, s32, {WS_S}")
sbase(44, 14, "s33")
a("s_lshl_b32 s32, s96, 2")
sbase(16, 16, "s32")
sbase(10, 10, "s32")
sbase(12, 12, "s32")
a("s_load_dword s46, s[16:17], 0")
a("s_load_dword s47, s[10:11], 0")
for u in range(4):
    a(f"v_lshlrev_b32 v{8+u}, 12, {vLANE}")
    if u: a(f"v_add_u32 v{8+u}, {u*262144}, v{8+u}")
a(f"s_mov_b32 s100, {SPIN}")
a("v_mov_b32 v14, 0")
a("s_waitcnt lgkmcnt(0)")
a("s_lshl_b32 s48, s46, 16")
a("s_and_b32 s49, s46, 0xffff0000")
a("s_lshl_b32 s50, s47, 16")
a("s_and_b32 s51, s47, 0xffff0000")
a("v_mov_b32 v48, s48")
a("v_mov_b32 v49, s49")
a("v_cndmask_b32 v48, v48, v49, s[94:95]")
a("v_mov_b32 v49, s50")
a("v_mov_b32 v50, s51")
a("v_cndmask_b32 v49, v49, v50, s[94:95]")
a(f"v_lshrrev_b32 v51, 5, {vLANE}")
a("v_lshlrev_b32 v51, 1, v51")
a("L_flwait:")
a(f"ds_read_b32 v15, v14 offset:{L_FL}")
a("s_sub_u32 s100, s100, 1")
a("s_cbranch_scc1 L_flgot")
a("s_waitcnt lgkmcnt(0)")
a("v_cmp_eq_u32 vcc, 0, v15")
a("s_cbranch_vccnz L_flwait")
a("L_flgot:")
a(f"s_mov_b32 s100, {SPIN}")
def gather(tag, base, G):
    a(f"{tag}_poll:")
    for u in range(4):
        a(f"global_load_dwordx4 {vr(G+4*u)}, v{8+u}, {base} sc1")
    a("s_waitcnt vmcnt(0)")
    tagcheck([G + 1 + 2*n for n in range(8)])
    a("s_sub_u32 s100, s100, 1")
    a(f"s_cbranch_scc1 {tag}_got")
    a(f"s_cbranch_vccnz {tag}_poll")
    a(f"{tag}_got:")
    a(f"v_add_f32 v{G}, v{G}, v{G+4}")
    a(f"v_add_f32 v{G+8}, v{G+8}, v{G+12}")
    a(f"v_add_f32 v{G+2}, v{G+2}, v{G+6}")
    a(f"v_add_f32 v{G+10}, v{G+10}, v{G+14}")
    a(f"v_add_f32 v{G}, v{G}, v{G+8}")
    a(f"v_add_f32 v{G+2}, v{G+2}, v{G+10}")
    a(f"v_permlane32_swap_b32 v{G}, v{G+2}")
    a(f"v_add_f32 v{G}, v{G}, v{G+2}")
    a(f"v_mov_b32 v{G+1}, v{G}")
    a(f"v_permlane16_swap_b32 v{G}, v{G+1}")
    a(f"v_add_f32 v{G}, v{G}, v{G+1}")
    row_allreduce("v_add_f32", f"v{G}")
gather("L_y", "s[42:43]", 16)
stamp(12)
bf16_round("v16", "v16")
a("v_add_f32 v16, v16, v49")
bf16_round("v16", "v16")
a("v_mul_f32 v50, 0xbfb8aa3b, v16")
a("v_exp_f32 v50, v50")
a("v_add_f32 v50, 1.0, v50")
a("v_rcp_f32 v50, v50")
a("v_mul_f32 v50, v50, v16")
bf16_round("v50", "v50")
gather("L_s", "s[44:45]", 32)
stamp(13)
if DIAG:
    a(f"s_sub_u32 s101, {SPIN}, s100")
    a("v_writelane_b32 v128, s101, 21")
bf16_round("v32", "v32")
a("v_mul_f32 v32, v32, v50")
bf16_round("v32", "v32")
a("v_add_f32 v32, v32, v48")
a("v_cvt_pk_bf16_f32 v32, v32, v32")
a("s_mov_b32 s32, 1")
a("s_mov_b32 s33, 1")
a("s_mov_b64 exec, s[32:33]")
a("global_store_short v51, v32, s[12:13]")
a("s_cmp_lg_u32 s2, 0")
a("s_cbranch_scc1 L_noep")
a("s_mov_b64 exec, 1")
a("v_mov_b32 v33, s6")
a("v_mov_b32 v34, 0")
a("global_store_dword v34, v33, s[14:15]")
a("L_noep:")
stamp(14)
diag_flush()
a("L_end:")
a("s_endpgm")

nv = 136 if DIAG else 128
txt = header
txt += f"; @launch grid=(256,1,1) block=(512,1,1) lds={LDS_BYTES}\n"
txt += '.amdgcn_target "amdgcn-amd-amdhsa--gfx950"\n.text\n'
txt += f".globl {NAME}_kernel\n.p2align 8\n.type {NAME}_kernel,@function\n"
txt += a.text()
txt += f""".section .rodata,"a"
.p2align 6
.amdhsa_kernel {NAME}_kernel
  .amdhsa_next_free_vgpr {nv}
  .amdhsa_next_free_sgpr 102
  .amdhsa_accum_offset {nv}
  .amdhsa_group_segment_fixed_size 0
  .amdhsa_kernarg_size 104
  .amdhsa_user_sgpr_count 2
  .amdhsa_user_sgpr_kernarg_segment_ptr 1
  .amdhsa_system_sgpr_workgroup_id_x 1
.end_amdhsa_kernel
"""
open(OUT, "w").write(txt)
```

```python
import sys
sys.path.insert(0, "work")
from asmlib import Asm
NAME = "recurrent_scan__sliding_block_cached__dense_activation_gelu__decode"
DIAG = "--diag" in sys.argv
OUT = [a for a in sys.argv[1:] if not a.startswith("--")][0]
def opt(name, default):
    for x in sys.argv:
        if x.startswith("--" + name + "="): return int(x.split("=")[1])
    return default
NV1 = opt("nv1", 2)
NOFAST = opt("nofast", 0)

WS_QA = 0x10000
WS_QB = 0x30000
WS_H = 0x50000
WS_S = 0x80000
WS_Y = 0xA0000
WS_OA = 0x100000
WS_OB = 0x200000
WS_DIAG = 0x800000
L_WQ = 0x0000
L_W1 = 0x4000
L_XN = 0x6000
L_QS = 0x6400
L_MX = 0x6800
L_LS = 0x6810
L_SP = 0x6900
L_OR = 0x8000
LDS_BYTES = L_OR + 8 * 3072
SPIN = 1 << 18

a = Asm()
header = open("cdna_kernels/" + NAME + ".s.ref").read().split("; Override launch")[0]
vLANE, vI16, vQ4 = "v1", "v2", "v3"
vM = ["v4", "v5", "v6", "v7"]
K0, V0, QB0, G0, PA0, W0 = 16, 32, 48, 64, 80, 112
X0 = 128
NVGPR = 168
vST, vST2 = "v168", "v169"
def vr(b, n=4): return f"v[{b}:{b+n-1}]"

def stamp(idx):
    if not DIAG: return
    a(f"s_memrealtime s[98:99]")
    a("s_waitcnt lgkmcnt(0)")
    a(f"v_writelane_b32 {vST}, s98, {idx}")
def count(idx):
    if not DIAG: return
    a(f"s_sub_u32 s101, {SPIN}, s100")
    a(f"v_writelane_b32 {vST}, s101, {idx}")
def diag_flush():
    if not DIAG: return
    a("s_mov_b64 exec, -1")
    a("s_lshl_b32 s7, s2, 3")
    a("s_add_u32 s7, s7, s5")
    a("s_lshl_b32 s7, s7, 8")
    a(f"s_add_u32 s7, s7, {WS_DIAG}")
    a("s_add_u32 s98, s14, s7")
    a("s_addc_u32 s99, s15, 0")
    a(f"v_lshlrev_b32 {vST2}, 2, {vLANE}")
    a(f"global_store_dword {vST2}, {vST}, s[98:99]")
def bf16_round_pair(dlo, dhi, slo, shi, tmp):
    a(f"v_cvt_pk_bf16_f32 {tmp}, {slo}, {shi}")
    a(f"v_lshlrev_b32 {dlo}, 16, {tmp}")
    a(f"v_and_b32 {dhi}, 0xffff0000, {tmp}")
def bf16_round(d, s):
    a(f"v_cvt_pk_bf16_f32 {d}, {s}, {s}")
    a(f"v_and_b32 {d}, 0xffff0000, {d}")
def dpp(op, d, s0, s1, ctrl):
    if op == "v_mov_b32": a(f"v_mov_b32_dpp {d}, {s0} {ctrl} row_mask:0xf bank_mask:0xf")
    else: a(f"{op}_dpp {d}, {s0}, {s1} {ctrl} row_mask:0xf bank_mask:0xf")
def row_allreduce(op, x):
    for r in (8, 4, 2, 1): dpp(op, x, x, x, f"row_ror:{r}")
def wave_allreduce(op, x, t):
    row_allreduce(op, x)
    a(f"v_mov_b32 {t}, {x}")
    a(f"v_permlane16_swap_b32 {x}, {t}")
    a(f"{op} {x}, {x}, {t}")
    a(f"v_mov_b32 {t}, {x}")
    a(f"v_permlane32_swap_b32 {x}, {t}")
    a(f"{op} {x}, {x}, {t}")
def sbase(dst, src, off):
    a(f"s_add_u32 s{dst}, s{src}, {off}")
    a(f"s_addc_u32 s{dst+1}, s{src+1}, 0")
def tagcheck(regs, t0="v12", t1="v13"):
    if len(regs) == 1:
        a(f"v_cmp_ne_u32 vcc, s6, v{regs[0]}"); return
    a(f"v_xor_b32 {t0}, s6, v{regs[0]}")
    i = 1
    while i < len(regs):
        a(f"v_xor_b32 {t1}, s6, v{regs[i]}")
        if i + 1 < len(regs):
            a(f"v_xor_b32 v{regs[i+1]}, s6, v{regs[i+1]}")
            a(f"v_or3_b32 {t0}, {t0}, {t1}, v{regs[i+1]}")
            i += 2
        else:
            a(f"v_or_b32 {t0}, {t0}, {t1}")
            i += 1
    a(f"v_cmp_ne_u32 vcc, 0, {t0}")
def pack24(dst, src):
    for n in range(3):
        a(f"v_perm_b32 v{dst+n}, v{src+n}, v{src+3}, s{88+n}")
    a(f"v_mov_b32 v{dst+3}, s6")

a(f"{NAME}_kernel:")
if DIAG: a("s_memrealtime s[100:101]")
a("s_cmp_ge_u32 s2, 256")
a("s_cbranch_scc1 L_end")
a("s_load_dwordx16 s[16:31], s[0:1], 0")
a("s_load_dwordx4 s[8:11], s[0:1], 64")
a("s_load_dwordx2 s[12:13], s[0:1], 80")
a("s_load_dwordx2 s[14:15], s[0:1], 96")
a(f"v_and_b32 {vLANE}, 63, v0")
a("v_lshrrev_b32 v8, 6, v0")
a(f"v_and_b32 {vI16}, 15, v0")
a(f"v_bfe_u32 {vQ4}, v0, 4, 2")
a("v_readfirstlane_b32 s5, v8")
a("s_and_b32 s3, s2, 7")
a("s_lshr_b32 s4, s2, 3")
if DIAG: a(f"v_mov_b32 {vST}, 0")
a(f"v_bfe_u32 v8, {vLANE}, 1, 3")
a(f"v_and_b32 v9, 1, {vLANE}")
a("v_lshlrev_b32 v9, 4, v9")
a(f"v_lshl_add_u32 v9, {vQ4}, 5, v9")
a("v_lshl_add_u32 v10, v8, 13, v9")
a("v_xor_b32 v11, 0x8000, v10")
a("v_add_u32 v11, 0x10000, v11")
a("s_and_b32 s32, s5, 1")
a("s_lshl_b32 s32, s32, 2")
a("v_xor_b32 v12, s32, v8")
a("v_mul_u32_u24 v12, 3584, v12")
a("v_add_u32 v12, v12, v9")
a(f"v_lshlrev_b32 v13, 7, {vI16}")
a("v_and_b32 v13, 0x700, v13")
a(f"v_and_b32 v14, 1, {vI16}")
a("v_lshl_add_u32 v13, v14, 6, v13")
a(f"v_lshl_add_u32 v13, {vQ4}, 4, v13")
a(f"v_lshlrev_b32 v15, 9, {vQ4}")
a(f"v_lshl_add_u32 v15, {vI16}, 4, v15")
a(f"v_lshlrev_b32 v14, 4, {vLANE}")
for i in range(4): a(f"v_mov_b32 v{V0+i}, 0")
a("s_lshl_b32 s96, s3, 5")
a("s_add_u32 s96, s96, s4")
a("s_lshr_b32 s32, s4, 2")
a("s_lshl_b32 s32, s32, 7")
a("s_lshl_b32 s33, s3, 10")
a("s_add_u32 s32, s32, s33")
a("s_and_b32 s97, s4, 3")
a("s_lshl_b32 s33, s97, 20")
a("s_add_u32 s32, s32, s33")
a("s_lshl_b32 s33, s5, 17")
a("s_add_u32 s32, s32, s33")
a("s_min_u32 s34, s96, 223")
a("s_lshr_b32 s35, s34, 3")
a("s_lshl_b32 s35, s35, 7")
a("s_and_b32 s36, s34, 7")
a("s_lshl_b32 s36, s36, 3")
a("s_add_u32 s36, s36, s5")
a(f"s_mul_i32 s36, s36, {8*3584}")
a("s_add_u32 s36, s36, s35")
a("s_lshl_b32 s37, s3, 23")
a("s_lshl_b32 s38, s4, 15")
a("s_add_u32 s37, s37, s38")
a("s_lshl_b32 s38, s5, 12")
a("s_add_u32 s37, s37, s38")
a("s_add_u32 s37, s37, 0x700000")
a("s_lshl_b32 s39, s5, 11")
a("s_lshl_b32 s40, s5, 10")
a(f"s_add_u32 s40, s40, {L_W1}")
a("s_lshl_b32 s41, s96, 12")
a("s_and_b32 s42, s5, 3")
a("s_lshl_b32 s42, s42, 10")
a("s_add_u32 s41, s41, s42")
a(f"s_add_u32 s41, s41, {WS_OA}")
a("s_waitcnt lgkmcnt(0)")
a("s_load_dword s6, s[14:15], 0")
sbase(22, 22, "s32")
a("s_mov_b32 m0, s39")
a("s_cmp_lg_u32 s5, 0")
a("s_cbranch_scc1 L_nox")
a(f"global_load_dwordx4 {vr(W0)}, v14, s[16:17]")
a("L_nox:")
a("global_load_lds_dwordx4 v10, s[22:23] nt")
sbase(28, 28, "s36")
a("s_add_u32 s39, s39, 1024")
a("s_mov_b32 m0, s39")
sbase(18, 18, "s37")
a("global_load_lds_dwordx4 v11, s[22:23] nt")
a("s_mov_b32 m0, s40")
sbase(20, 20, "s37")
a("s_cmp_lt_u32 s96, 224")
a("s_cbranch_scc1 L_w1ok")
a("s_mov_b64 exec, 1")
a("L_w1ok:")
a("global_load_lds_dwordx4 v12, s[28:29] nt")
a("s_mov_b64 exec, -1")
a("s_cmp_lt_u32 s5, 4")
a("s_cbranch_scc1 L_nopre")
sbase(42, 14, "s41")
a(f"global_store_dwordx4 v14, {vr(V0)}, s[42:43]")
a("L_nopre:")
a("s_barrier")
for kh in range(2):
    for hf in range(2):
        a(f"global_load_dwordx4 {vr(K0+8*kh+4*hf)}, v13, s[18:19] offset:{kh*2048+hf*128} nt")
if DIAG: a(f"v_writelane_b32 {vST}, s100, 0")
a(f"v_and_b32 v8, 1, {vI16}")
a("v_cmp_eq_u32 vcc, 1, v8")
a("v_mov_b32 v9, 0xffff")
a("v_mov_b32 v10, 0xffff0000")
a("v_cndmask_b32 v9, v9, v10, vcc")
a("s_mov_b64 s[92:93], vcc")
a(f"v_bfe_u32 v8, {vI16}, 1, 2")
for d in range(4):
    a(f"v_cmp_eq_u32 vcc, {d}, v8")
    a(f"v_cndmask_b32 {vM[d]}, 0, v9, vcc")
a("s_mov_b32 s88, 0x07060503")
a("s_mov_b32 s89, 0x07060502")
a("s_mov_b32 s90, 0x07060501")
a("s_cmp_lg_u32 s5, 0")
a("s_cbranch_scc1 L_noln")
a("s_waitcnt vmcnt(7)")
X = [f"v{V0+i}" for i in range(8)]
for d in range(4):
    a(f"v_lshlrev_b32 {X[2*d]}, 16, v{W0+d}")
    a(f"v_and_b32 {X[2*d+1]}, 0xffff0000, v{W0+d}")
a(f"v_add_f32 v8, {X[0]}, {X[1]}")
a(f"v_add_f32 v9, {X[2]}, {X[3]}")
a(f"v_add_f32 v10, {X[4]}, {X[5]}")
a(f"v_add_f32 v11, {X[6]}, {X[7]}")
a("v_add_f32 v8, v8, v9")
a("v_add_f32 v10, v10, v11")
a("v_add_f32 v8, v8, v10")
wave_allreduce("v_add_f32", "v8", "v9")
a("v_mul_f32 v8, 0x3b000000, v8")
D = [f"v{V0+8+i}" for i in range(8)]
for i in range(8): a(f"v_sub_f32 {D[i]}, {X[i]}, v8")
a(f"v_mul_f32 v10, {D[0]}, {D[0]}")
for i in range(1, 8): a(f"v_fmac_f32 v10, {D[i]}, {D[i]}")
wave_allreduce("v_add_f32", "v10", "v9")
a("v_mul_f32 v10, 0x3b000000, v10")
bf16_round("v10", "v10")
a("v_add_f32 v10, 0x3727c5ac, v10")
bf16_round("v10", "v10")
a("v_sqrt_f32 v10, v10")
bf16_round("v10", "v10")
a("v_rcp_f32 v10, v10")
bf16_round("v8", "v8")
for i in range(8): a(f"v_sub_f32 {D[i]}, {X[i]}, v8")
for d in range(4): bf16_round_pair(D[2*d], D[2*d+1], D[2*d], D[2*d+1], "v9")
for i in range(8): a(f"v_mul_f32 {D[i]}, {D[i]}, v10")
for d in range(4): a(f"v_cvt_pk_bf16_f32 v{W0+d}, {D[2*d]}, {D[2*d+1]}")
a(f"ds_write_b128 v14, {vr(W0)} offset:{L_XN}")
a("v_mov_b32 v8, 0")
for i in range(4): a(f"v_mov_b32 v{116+i}, 0xff800000")
for i in range(4): a(f"v_mov_b32 v{120+i}, 0")
a("s_mov_b64 exec, 1")
a(f"ds_write_b128 v8, v[116:119] offset:{L_MX}")
a(f"ds_write_b128 v8, v[120:123] offset:{L_LS}")
a("s_mov_b64 exec, -1")
a("L_noln:")
a("s_and_b32 s32, s5, 3")
a("s_lshl_b32 s32, s32, 8")
a(f"v_lshlrev_b32 v8, 10, {vQ4}")
a(f"v_lshl_add_u32 v8, {vI16}, 3, v8")
a("v_add_u32 v8, s32, v8")
a(f"v_and_b32 v9, 1, {vQ4}")
a("v_lshlrev_b32 v9, 7, v9")
a("v_add_u32 v10, v8, v9")
a("v_xor_b32 v9, 128, v9")
a("v_add_u32 v11, v8, v9")
a(f"v_lshlrev_b32 v12, 4, {vQ4}")
a(f"v_lshlrev_b32 v13, 3, {vLANE}")
a("s_waitcnt lgkmcnt(0)")
a("s_lshr_b32 s6, s6, 1")
a("s_mul_i32 s6, s6, 0x5DEECE6D")
a("s_add_u32 s6, s6, 0xB")
a("s_lshl_b32 s6, s6, 1")
a("s_or_b32 s6, s6, 1")
def vload(n):
    kh, aa = n >> 1, n & 1
    a(f"global_load_dwordx4 {vr(V0+4*n)}, v15, s[20:21] offset:{kh*2048+aa*256} nt")
def partial(nsteps, lbase):
    for t in range(nsteps):
        a(f"ds_read_b128 {vr(QB0+4*t)}, v12 offset:{L_XN + t*64}")
        b = PA0 + 4*t
        a(f"ds_read_b64_tr_b16 v[{b}:{b+1}], v10 offset:{lbase + t*4096}")
        a(f"ds_read_b64_tr_b16 v[{b+2}:{b+3}], v11 offset:{lbase + t*4096}")
    a(f"v_mov_b32 v{G0+1}, s6")
    a(f"v_mov_b32 v{G0+3}, s6")
    for t in range(nsteps):
        a(f"s_waitcnt lgkmcnt({3*(nsteps-1-t)})")
        c = "0" if t == 0 else "v[124:127]"
        a(f"v_mfma_f32_16x16x32_bf16 v[124:127], {vr(QB0+4*t)}, {vr(PA0+4*t)}, {c}")
def partial_fin():
    a(f"v_mov_b32 v{G0}, v124")
    dpp("v_mov_b32", f"v{G0+2}", "v124", None, "quad_perm:[1,0,3,2]")
    a("s_mov_b64 exec, 0x5555")
a("s_cmp_ge_u32 s5, 4")
a("s_cbranch_scc1 L_B0b")
a("s_lshl_b32 s32, s97, 8")
a("v_add_u32 v12, s32, v12")
a("s_lshl_b32 s32, s3, 14")
a("s_lshl_b32 s33, s97, 12")
a("s_add_u32 s32, s32, s33")
a("s_lshr_b32 s33, s4, 2")
a("s_lshl_b32 s33, s33, 9")
a("s_add_u32 s32, s32, s33")
a("s_lshl_b32 s33, s5, 7")
a("s_add_u32 s32, s32, s33")
a(f"s_add_u32 s32, s32, {WS_QA}")
sbase(42, 14, "s32")
sbase(52, 42, WS_QB - WS_QA)
a("s_lshl_b32 s32, s3, 14")
a("s_lshl_b32 s33, s5, 10")
a("s_add_u32 s32, s32, s33")
a(f"s_add_u32 s32, s32, {WS_QA + 4096}")
sbase(44, 14, "s32")
sbase(46, 44, 8192)
a("s_and_b32 s32, s4, 28")
a("s_add_u32 s32, s32, s5")
a("s_lshl_b32 s33, s3, 5")
a("s_add_u32 s91, s32, s33")
a("s_lshl_b32 s32, s91, 14")
a("s_lshl_b32 s33, s97, 8")
a("s_add_u32 s32, s32, s33")
sbase(24, 24, "s32")
a("s_waitcnt vmcnt(4)")
stamp(2)
a("s_barrier")
stamp(3)
partial(4, L_WQ)
a(f"v_lshlrev_b32 v10, 4, {vLANE}")
a(f"v_lshlrev_b32 v11, 12, {vQ4}")
a(f"v_lshl_add_u32 v11, {vI16}, 4, v11")
partial_fin()
if not NOFAST: a(f"global_store_dwordx4 v13, {vr(G0)}, s[42:43]")
a(f"global_store_dwordx4 v13, {vr(G0)}, s[52:53] sc1")
a("s_mov_b64 exec, -1")
stamp(4)
a("s_barrier")
for n in range(NV1): vload(n)
a(f"s_waitcnt vmcnt({NV1 + (1 if NOFAST else 2)})")
stamp(1)
a("s_barrier")
def qgather():
    a(f"global_load_dwordx4 {vr(G0)}, v10, s[44:45] offset:-4096 sc1")
    a(f"global_load_dwordx4 {vr(G0+4)}, v10, s[44:45] sc1")
    a(f"global_load_dwordx4 {vr(G0+8)}, v10, s[46:47] offset:-4096 sc1")
    a(f"global_load_dwordx4 {vr(G0+12)}, v10, s[46:47] sc1")
qgather()
a("s_barrier")
for n in range(NV1, 4): vload(n)
a("s_barrier")
for rg in range(4):
    a(f"global_load_dwordx4 {vr(W0+4*rg)}, v11, s[24:25] offset:{rg*1024} nt")
stamp(5)
a(f"s_mov_b32 s100, {SPIN}")
a(f"s_waitcnt vmcnt({8 - NV1})")
a("s_branch L_qchk")
a("L_qpoll:")
a(f"v_xor_b32 v10, {WS_QA ^ WS_QB}, v10")
qgather()
a("s_waitcnt vmcnt(0)")
a("L_qchk:")
tagcheck([G0 + 1 + 2*n for n in range(8)])
a("s_sub_u32 s100, s100, 1")
a("s_cbranch_scc1 L_qgot")
a("s_cbranch_vccnz L_qpoll")
a("L_qgot:")
a(f"v_add_f32 v8, v{G0}, v{G0+4}")
a(f"v_add_f32 v9, v{G0+8}, v{G0+12}")
a(f"v_add_f32 v12, v{G0+2}, v{G0+6}")
a(f"v_add_f32 v13, v{G0+10}, v{G0+14}")
a("v_add_f32 v8, v8, v9")
a("v_add_f32 v12, v12, v13")
a("s_lshl_b32 s32, s5, 8")
a(f"v_lshl_add_u32 v9, {vLANE}, 2, s32")
a("v_cvt_pk_bf16_f32 v8, v8, v12")
a(f"ds_write_b32 v9, v8 offset:{L_QS}")
count(20)
a("s_mov_b32 s87, 4")
a("s_branch L_B1")
a("L_B0b:")
a("s_and_b32 s33, s96, 7")
a("s_lshl_b32 s32, s33, 7")
a("v_add_u32 v12, s32, v12")
a("s_mul_i32 s32, s33, 14336")
a("s_lshr_b32 s33, s96, 3")
a("s_lshl_b32 s33, s33, 9")
a("s_add_u32 s32, s32, s33")
a("s_and_b32 s33, s5, 3")
a("s_lshl_b32 s33, s33, 7")
a("s_add_u32 s32, s32, s33")
a("s_cmp_lt_u32 s96, 224")
a("s_cselect_b32 s32, s32, 0x1e000")
a(f"s_add_u32 s32, s32, {WS_H}")
sbase(42, 14, "s32")
a("s_lshr_b32 s7, s96, 2")
a("s_mul_i32 s7, s7, 28")
a("s_lshl_b32 s32, s7, 3")
a(f"s_add_u32 s32, s32, {WS_H}")
sbase(44, 14, "s32")
a("s_lshl_b32 s32, s7, 10")
a("s_lshl_b32 s33, s97, 8")
a("s_add_u32 s32, s32, s33")
sbase(8, 8, "s32")
a("s_lshl_b32 s32, s7, 1")
sbase(30, 30, "s32")
a("s_waitcnt vmcnt(4)")
stamp(2)
a("s_barrier")
stamp(3)
partial(2, L_W1)
a(f"v_and_b32 v10, 7, {vI16}")
a("v_mul_u32_u24 v10, 14336, v10")
a(f"v_mul_u32_u24 v11, 7, {vQ4}")
a(f"v_lshrrev_b32 v12, 3, {vI16}")
a("v_lshl_add_u32 v12, v12, 2, v11")
a("v_lshl_add_u32 v10, v12, 3, v10")
a("v_lshlrev_b32 v12, 1, v12")
a("v_lshlrev_b32 v11, 10, v11")
a(f"v_lshl_add_u32 v11, {vI16}, 4, v11")
partial_fin()
a(f"global_store_dwordx4 v13, {vr(G0)}, s[42:43] sc1")
a("s_mov_b64 exec, -1")
stamp(4)
a("s_barrier")
for n in range(NV1): vload(n)
a(f"s_waitcnt vmcnt({NV1 + 1})")
stamp(1)
a("s_barrier")
a("s_barrier")
for n in range(NV1, 4): vload(n)
a("s_barrier")
HG = X0 + 28
B1R = X0 + 36
def hgather():
    a(f"global_load_dwordx4 {vr(HG)}, v{W0}, s[44:45] sc1")
    a(f"global_load_dwordx4 {vr(HG+4)}, v{W0}, s[44:45] offset:16 sc1")
a("s_mov_b32 s87, 0")
a(f"v_mov_b32 v{W0}, v10")
a("s_cmp_lg_u32 s5, 4")
a("s_cbranch_scc1 L_now2")
a("v_add_u32 v13, 4096, v11")
for rg in range(7):
    if rg < 4: a(f"global_load_dwordx4 {vr(X0+4*rg)}, v11, s[8:9] offset:{rg*1024} nt")
    else: a(f"global_load_dwordx4 {vr(X0+4*rg)}, v13, s[8:9] offset:{(rg-4)*1024} nt")
hgather()
a("v_min_u32 v13, 48, v12")
for n in range(3):
    a(f"global_load_ushort v{B1R+n}, v12, s[30:31] offset:{2*n}")
a(f"global_load_ushort v{B1R+3}, v13, s[30:31] offset:6")
a("s_mov_b32 s87, 13")
a("L_now2:")
stamp(5)
a("L_B1:")
a(f"v_lshrrev_b32 v8, 3, {vI16}")
a("v_lshlrev_b32 v14, 2, v8")
a("v_lshlrev_b32 v8, 8, v8")
a(f"v_lshl_add_u32 v8, {vQ4}, 4, v8")
a(f"v_and_b32 v9, 1, {vI16}")
a("v_lshl_add_u32 v8, v9, 6, v8")
a("s_mov_b32 s32, 0x3db504f3")
a("s_mov_b32 s33, 0x3fb8aa3b")
a("s_mov_b32 s34, 0x01010101")
a("s_mov_b32 s35, 0x01010101")
a("s_waitcnt lgkmcnt(0)")
stamp(6)
a("s_barrier")
for p in range(2):
    for hf in range(2):
        a(f"ds_read_b128 {vr(QB0+8*p+4*hf)}, v8 offset:{L_QS + p*512 + hf*128}")
DD = lambda p, kh: G0 + 8*p + 4*kh
for hf in range(2):
    for p in range(2):
        if hf == 0: a(f"s_waitcnt lgkmcnt({3-2*p})")
        elif p == 1: a("s_waitcnt lgkmcnt(0)")
        for kh in range(2):
            c = "0" if hf == 0 else vr(DD(p, kh))
            a(f"v_mfma_f32_16x16x32_bf16 {vr(DD(p,kh))}, {vr(K0+8*kh+4*hf)}, {vr(QB0+8*p+4*hf)}, {c}")
a("s_mul_i32 s36, s5, 3072")
a(f"v_mul_u32_u24 v8, 384, {vQ4}")
a(f"v_lshl_add_u32 v8, {vI16}, 4, v8")
a("v_add_u32 v8, s36, v8")
S = [[f"v{K0+4*p+n}" for n in range(4)] for p in range(2)]
for p in range(2):
    for kh in range(2):
        for aa in range(2):
            d = DD(p, kh) + 2*aa
            a(f"v_cndmask_b32 {S[p][kh*2+aa]}, v{d}, v{d+1}, s[92:93]")
for p in range(2):
    for n in range(4):
        dpp("v_add_f32", S[p][n], S[p][n], S[p][n], "quad_perm:[1,0,3,2]")
for p in range(2):
    for r in (0, 2):
        bf16_round_pair(S[p][r], S[p][r+1], S[p][r], S[p][r+1], "v9")
        a(f"v_mul_f32 {S[p][r]}, s32, {S[p][r]}")
        a(f"v_mul_f32 {S[p][r+1]}, s32, {S[p][r+1]}")
        bf16_round_pair(S[p][r], S[p][r+1], S[p][r], S[p][r+1], "v9")
    a(f"v_max3_f32 v{10+p}, {S[p][0]}, {S[p][1]}, {S[p][2]}")
    a(f"v_max_f32 v{10+p}, v{10+p}, {S[p][3]}")
a("s_mov_b64 exec, s[34:35]")
a(f"ds_max_f32 v14, v10 offset:{L_MX}")
a(f"ds_max_f32 v14, v11 offset:{L_MX+8}")
a("s_mov_b64 exec, -1")
a("s_waitcnt lgkmcnt(0)")
stamp(7)
a("s_barrier")
a(f"ds_read_b32 v10, v14 offset:{L_MX}")
a(f"ds_read_b32 v11, v14 offset:{L_MX+8}")
a("s_waitcnt lgkmcnt(0)")
a("v_mul_f32 v10, s33, v10")
a("v_mul_f32 v11, s33, v11")
for p in range(2):
    for r in range(4): a(f"v_fma_f32 {S[p][r]}, {S[p][r]}, s33, -v{10+p}")
    for r in range(4): a(f"v_exp_f32 {S[p][r]}, {S[p][r]}")
for p in range(2):
    for r in range(4):
        a(f"v_cvt_pk_bf16_f32 v{24+4*p+r}, {S[p][r]}, {S[p][r]}")
        for d in range(4):
            a(f"v_and_b32 v{PA0+16*p+4*r+d}, v{24+4*p+r}, {vM[d]}")
for p in range(2):
    a(f"v_add_f32 v12, {S[p][0]}, {S[p][1]}")
    a(f"v_add_f32 v13, {S[p][2]}, {S[p][3]}")
    a(f"v_add_f32 v{10+p}, v12, v13")
a("s_mov_b64 exec, s[34:35]")
a(f"ds_add_f32 v14, v10 offset:{L_LS}")
a(f"ds_add_f32 v14, v11 offset:{L_LS+8}")
a("s_mov_b64 exec, -1")
stamp(8)
ACC = [QB0, QB0 + 4]
def pvm(r):
    for p in range(2):
        c = "0" if r == 0 else vr(ACC[p])
        a(f"v_mfma_f32_16x16x32_bf16 {vr(ACC[p])}, {vr(PA0+16*p+4*r)}, {vr(V0+4*r)}, {c}")
a("s_cmp_eq_u32 s87, 4")
a("s_cbranch_scc1 L_vw4")
a("s_cmp_eq_u32 s87, 13")
a("s_cbranch_scc1 L_vw13")
a("s_waitcnt vmcnt(0)")
a("L_vw4:")
a("s_waitcnt vmcnt(4)")
a("L_vw13:")
a("s_waitcnt vmcnt(13)")
for r in range(4): pvm(r)
a("s_cmp_lt_u32 s5, 4")
a("s_cbranch_scc1 L_wo")
a("s_and_b32 s36, s5, 3")
a("s_mul_i32 s37, s36, 768")
a(f"v_bfe_u32 v9, {vLANE}, 1, 1")
a("v_mul_u32_u24 v9, 384, v9")
a(f"v_lshrrev_b32 v12, 2, {vLANE}")
a("v_lshl_add_u32 v9, v12, 4, v9")
for p in range(2):
    a(f"ds_write_b128 v8, {vr(ACC[p])} offset:{L_OR + p*1536}")
a(f"v_and_b32 v12, 1, {vLANE}")
a("v_lshl_add_u32 v9, v12, 3, v9")
a("v_add_u32 v9, s37, v9")
a(f"v_lshrrev_b32 v10, 3, {vLANE}")
a("v_lshlrev_b32 v10, 12, v10")
a(f"v_and_b32 v12, 7, {vLANE}")
a("v_lshl_add_u32 v10, v12, 4, v10")
a("s_lshl_b32 s38, s36, 2")
a("v_mov_b32 v14, s38")
a("s_lshl_b32 s32, s3, 17")
a("s_lshl_b32 s37, s36, 15")
a("s_add_u32 s32, s32, s37")
a("s_lshl_b32 s37, s4, 7")
a("s_add_u32 s32, s32, s37")
a(f"s_add_u32 s32, s32, {WS_OA}")
sbase(36, 14, "s32")
sbase(38, 36, WS_OB - WS_OA)
a("v_mov_b32 v35, s6")
a("s_waitcnt lgkmcnt(0)")
stamp(9)
a("s_barrier")
a(f"ds_read_b32 v11, v14 offset:{L_LS}")
a(f"ds_read_b32 v12, v14 offset:{L_MX}")
for w in range(8):
    a(f"ds_read_b64 v[{16+2*w}:{17+2*w}], v9 offset:{L_OR + w*3072}")
a("s_waitcnt lgkmcnt(8)")
a("v_log_f32 v13, v11")
a("v_rcp_f32 v11, v11")
a("v_fma_f32 v34, v12, s33, v13")
a("s_waitcnt lgkmcnt(4)")
a("v_pk_add_f32 v[16:17], v[16:17], v[18:19]")
a("v_pk_add_f32 v[20:21], v[20:21], v[22:23]")
a("s_waitcnt lgkmcnt(0)")
a("v_pk_add_f32 v[24:25], v[24:25], v[26:27]")
a("v_pk_add_f32 v[28:29], v[28:29], v[30:31]")
a("v_pk_add_f32 v[16:17], v[16:17], v[20:21]")
a("v_pk_add_f32 v[24:25], v[24:25], v[28:29]")
a("v_pk_add_f32 v[16:17], v[16:17], v[24:25]")
a("v_mul_f32 v32, v16, v11")
a("v_mul_f32 v33, v17, v11")
if not NOFAST: a("global_store_dwordx4 v10, v[32:35], s[36:37]")
a("global_store_dwordx4 v10, v[32:35], s[38:39] sc1")
stamp(10)
a("s_cmp_eq_u32 s5, 4")
a("s_cbranch_scc1 L_ffn2")
a("s_cmp_lg_u32 s5, 5")
a("s_cbranch_scc1 L_done")
a("s_cmp_lt_u32 s4, 16")
a("s_cbranch_scc1 L_final")
a("L_done:")
diag_flush()
a("s_endpgm")
a("L_ffn2:")
a(f"s_mov_b32 s100, {SPIN}")
a(f"v_cmp_gt_u32 s[40:41], 8, {vI16}")
a(f"s_waitcnt vmcnt({1 if NOFAST else 2})")
a("s_branch L_hchk")
a("L_hpoll:")
hgather()
a("s_waitcnt vmcnt(0)")
a("L_hchk:")
a("v_mov_b32 v14, s6")
a(f"v_cndmask_b32 v14, v14, v{HG+7}, s[40:41]")
tagcheck([HG+1, HG+3, HG+5, 14])
a("s_sub_u32 s100, s100, 1")
a("s_cbranch_scc1 L_hgot")
a("s_cbranch_vccnz L_hpoll")
a("L_hgot:")
H = [f"v{HG+2*n}" for n in range(4)]
for ctrl in ("quad_perm:[1,0,3,2]", "quad_perm:[2,3,0,1]", "row_half_mirror"):
    for n in range(4): dpp("v_add_f32", H[n], H[n], H[n], ctrl)
a("v_mov_b32 v30, 0x3d372713")
T4 = [f"v{16+n}" for n in range(4)]
for n in range(4): a(f"v_lshlrev_b32 v{B1R+n}, 16, v{B1R+n}")
for n in (0, 2): bf16_round_pair(H[n], H[n+1], H[n], H[n+1], "v9")
for n in range(4): a(f"v_add_f32 {H[n]}, {H[n]}, v{B1R+n}")
for n in (0, 2): bf16_round_pair(H[n], H[n+1], H[n], H[n+1], "v9")
for n in range(4): a(f"v_mul_f32 {T4[n]}, {H[n]}, {H[n]}")
for n in range(4): a(f"v_fma_f32 {T4[n]}, {T4[n]}, v30, 1.0")
for n in range(4): a(f"v_mul_f32 {T4[n]}, {T4[n]}, {H[n]}")
for n in range(4): a(f"v_mul_f32 {T4[n]}, 0xc0135761, {T4[n]}")
for n in range(4): a(f"v_exp_f32 {T4[n]}, {T4[n]}")
for n in range(4): a(f"v_add_f32 {T4[n]}, 1.0, {T4[n]}")
for n in range(4): a(f"v_rcp_f32 {T4[n]}, {T4[n]}")
for n in range(4): a(f"v_mul_f32 {H[n]}, {H[n]}, {T4[n]}")
for n in range(4): a(f"v_cvt_pk_bf16_f32 v{20+n}, {H[n]}, {H[n]}")
for n in range(3): dpp("v_mov_b32", f"v{24+n}", f"v{20+n}", None, "row_ror:8")
for rg in range(7):
    for d in range(4): a(f"v_and_b32 v{PA0+4*rg+d}, v{20+rg}, {vM[d]}")
for rg in range(7):
    c = "0" if rg == 0 else "v[124:127]"
    a(f"v_mfma_f32_16x16x32_bf16 v[124:127], {vr(PA0+4*rg)}, {vr(X0+4*rg)}, {c}")
a(f"v_lshlrev_b32 v10, 5, {vI16}")
a(f"v_lshl_add_u32 v10, {vQ4}, 4, v10")
a("s_lshl_b32 s32, s96, 9")
a(f"s_add_u32 s32, s32, {WS_Y}")
sbase(42, 14, "s32")
pack24(16, 124)
a("s_mov_b32 exec_hi, 0")
a("global_store_dwordx4 v10, v[16:19], s[42:43] sc1")
stamp(11)
diag_flush()
a("s_endpgm")
a("L_wo:")
a("s_lshl_b32 s32, s91, 12")
a(f"s_add_u32 s32, s32, {WS_OA}")
sbase(44, 14, "s32")
a(f"v_lshrrev_b32 v9, 1, {vI16}")
a("v_lshlrev_b32 v10, 7, v9")
a(f"v_lshl_add_u32 v10, {vQ4}, 5, v10")
for p in range(2):
    a(f"ds_write_b128 v8, {vr(ACC[p])} offset:{L_OR + p*1536}")
a(f"v_and_b32 v9, 1, {vI16}")
a("v_lshl_add_u32 v10, v9, 4, v10")
a(f"v_lshlrev_b32 v11, 5, {vI16}")
a(f"v_lshl_add_u32 v11, {vQ4}, 4, v11")
a("s_lshl_b32 s32, s5, 9")
a("v_add_u32 v11, s32, v11")
a(f"s_mov_b32 s100, {SPIN}")
a("s_waitcnt lgkmcnt(0)")
stamp(9)
a("s_barrier")
stamp(10)
OG0 = 16
a("L_opoll:")
for u in range(4):
    a(f"global_load_dwordx4 {vr(OG0+4*u)}, v10, s[44:45] offset:{u*1024} sc1")
a("s_sub_u32 s100, s100, 1")
a("s_cbranch_scc1 L_ogot")
a(f"s_cmp_gt_u32 s100, {SPIN - (1 if NOFAST else 32)}")
a("s_cbranch_scc1 L_onotog")
a(f"v_xor_b32 v10, {WS_OB - WS_OA}, v10")
a("L_onotog:")
a("s_waitcnt vmcnt(0)")
tagcheck([OG0 + 3 + 4*n for n in range(4)])
a("s_cbranch_vccnz L_opoll")
a("L_ogot:")
a("s_waitcnt vmcnt(0)")
stamp(11)
count(21)
a(f"v_max3_f32 v12, v{OG0+2}, v{OG0+6}, v{OG0+10}")
a(f"v_max_f32 v12, v12, v{OG0+14}")
for r in (8, 4, 2): dpp("v_max_f32", "v12", "v12", "v12", f"row_ror:{r}")
for u in range(4): a(f"v_sub_f32 v{OG0+4*u+2}, v{OG0+4*u+2}, v12")
for u in range(4): a(f"v_exp_f32 v{OG0+4*u+2}, v{OG0+4*u+2}")
a(f"v_add_f32 v14, v{OG0+2}, v{OG0+6}")
a(f"v_mul_f32 v12, v{OG0+2}, v{OG0}")
a(f"v_mul_f32 v13, v{OG0+2}, v{OG0+1}")
a(f"v_add_f32 v9, v{OG0+10}, v{OG0+14}")
for u in range(1, 4):
    a(f"v_fmac_f32 v12, v{OG0+4*u+2}, v{OG0+4*u}")
    a(f"v_fmac_f32 v13, v{OG0+4*u+2}, v{OG0+4*u+1}")
a("v_add_f32 v14, v14, v9")
for r in (8, 4, 2):
    for x in ("v14", "v12", "v13"): dpp("v_add_f32", x, x, x, f"row_ror:{r}")
a("v_rcp_f32 v14, v14")
a("v_mul_f32 v12, v12, v14")
a("v_mul_f32 v13, v13, v14")
a("v_cvt_pk_bf16_f32 v12, v12, v12")
a("v_cvt_pk_bf16_f32 v13, v13, v13")
dpp("v_mov_b32", "v48", "v12", None, "quad_perm:[0,0,2,2]")
dpp("v_mov_b32", "v49", "v13", None, "quad_perm:[0,0,2,2]")
dpp("v_mov_b32", "v50", "v12", None, "quad_perm:[1,1,3,3]")
dpp("v_mov_b32", "v51", "v13", None, "quad_perm:[1,1,3,3]")
for rg in range(4):
    for d in range(4): a(f"v_and_b32 v{PA0+4*rg+d}, v{48+rg}, {vM[d]}")
for rg in range(4):
    c = "0" if rg == 0 else "v[52:55]"
    a(f"v_mfma_f32_16x16x32_bf16 v[52:55], {vr(PA0+4*rg)}, {vr(W0+4*rg)}, {c}")
a("s_lshl_b32 s32, s96, 9")
a(f"s_add_u32 s32, s32, {WS_S}")
sbase(42, 14, "s32")
a(f"v_lshlrev_b32 v10, 4, {vLANE}")
a("s_mov_b32 exec_hi, 0")
a(f"ds_write_b128 v11, v[52:55] offset:{L_SP}")
a("s_waitcnt lgkmcnt(0)")
a("s_barrier")
a("s_cmp_lg_u32 s5, 0")
a("s_cbranch_scc1 L_done2")
for w in range(4):
    a(f"ds_read_b128 {vr(16+4*w)}, v10 offset:{L_SP + w*512}")
a("s_waitcnt lgkmcnt(2)")
a("v_pk_add_f32 v[16:17], v[16:17], v[20:21]")
a("v_pk_add_f32 v[18:19], v[18:19], v[22:23]")
a("s_waitcnt lgkmcnt(0)")
a("v_pk_add_f32 v[24:25], v[24:25], v[28:29]")
a("v_pk_add_f32 v[26:27], v[26:27], v[30:31]")
a("v_pk_add_f32 v[16:17], v[16:17], v[24:25]")
a("v_pk_add_f32 v[18:19], v[18:19], v[26:27]")
pack24(20, 16)
a("global_store_dwordx4 v10, v[20:23], s[42:43] sc1")
a("L_done2:")
stamp(12)
diag_flush()
a("s_endpgm")
a("L_final:")
a("s_lshl_b32 s32, s3, 4")
a("s_add_u32 s32, s32, s4")
a("s_lshl_b32 s33, s32, 4")
a(f"s_add_u32 s34, s33, {WS_Y}")
sbase(42, 14, "s34")
a(f"s_add_u32 s34, s33, {WS_S}")
sbase(44, 14, "s34")
a("s_lshl_b32 s33, s32, 3")
sbase(16, 16, "s33")
sbase(10, 10, "s33")
sbase(12, 12, "s33")
a(f"v_and_b32 v8, 1, {vQ4}")
a("v_lshlrev_b32 v8, 2, v8")
a(f"v_and_b32 v9, 2, {vQ4}")
a("v_add_u32 v51, v8, v9")
a("global_load_ushort v48, v51, s[16:17]")
a("global_load_ushort v49, v51, s[10:11]")
a(f"v_lshlrev_b32 v8, 11, {vLANE}")
a(f"s_mov_b32 s100, {SPIN}")
a("s_mov_b32 s46, 0x04000c0c")
a("s_mov_b32 s47, 0x0706000c")
def gather(tag, base, G):
    a(f"{tag}_poll:")
    a(f"global_load_dwordx4 {vr(G)}, v8, {base} sc1")
    a("s_sub_u32 s100, s100, 1")
    a(f"s_cbranch_scc1 {tag}_got")
    a("s_waitcnt vmcnt(0)")
    tagcheck([G + 3])
    a(f"s_cbranch_vccnz {tag}_poll")
    a(f"{tag}_got:")
    a("s_waitcnt vmcnt(0)")
    a(f"v_perm_b32 v{G+3}, v{G}, v{G+1}, s46")
    a(f"v_perm_b32 v{G+3}, v{G+3}, v{G+2}, s47")
    a(f"v_permlane32_swap_b32 v{G}, v{G+1}")
    a(f"v_permlane32_swap_b32 v{G+2}, v{G+3}")
    a(f"v_add_f32 v{G}, v{G}, v{G+1}")
    a(f"v_add_f32 v{G+2}, v{G+2}, v{G+3}")
    a(f"v_permlane16_swap_b32 v{G}, v{G+2}")
    a(f"v_add_f32 v{G}, v{G}, v{G+2}")
    row_allreduce("v_add_f32", f"v{G}")
a("s_barrier")
gather("L_y", "s[42:43]", 16)
stamp(12)
a("v_lshlrev_b32 v48, 16, v48")
a("v_lshlrev_b32 v49, 16, v49")
bf16_round("v16", "v16")
a("v_add_f32 v16, v16, v49")
bf16_round("v16", "v16")
a("v_mul_f32 v50, 0xbfb8aa3b, v16")
a("v_exp_f32 v50, v50")
a("v_add_f32 v50, 1.0, v50")
a("v_rcp_f32 v50, v50")
a("v_mul_f32 v50, v50, v16")
bf16_round("v50", "v50")
gather("L_s", "s[44:45]", 32)
stamp(13)
count(21)
bf16_round("v32", "v32")
a("v_mul_f32 v32, v32, v50")
bf16_round("v32", "v32")
a("v_add_f32 v32, v32, v48")
a("v_cvt_pk_bf16_f32 v32, v32, v32")
a("s_mov_b32 s32, 0x00010001")
a("s_mov_b32 s33, 0x00010001")
a("s_mov_b64 exec, s[32:33]")
a("global_store_short v51, v32, s[12:13]")
a("s_cmp_lg_u32 s2, 0")
a("s_cbranch_scc1 L_noep")
a("s_mov_b64 exec, 1")
a("v_mov_b32 v33, s6")
a("v_mov_b32 v34, 0")
a("global_store_dword v34, v33, s[14:15]")
a("L_noep:")
stamp(14)
diag_flush()
a("L_end:")
a("s_endpgm")

nv = 176 if DIAG else NVGPR
txt = header
txt += f"; @launch grid=(256,1,1) block=(512,1,1) lds={LDS_BYTES}\n"
txt += '.amdgcn_target "amdgcn-amd-amdhsa--gfx950"\n.text\n'
txt += f".globl {NAME}_kernel\n.p2align 8\n.type {NAME}_kernel,@function\n"
txt += a.text()
txt += f""".section .rodata,"a"
.p2align 6
.amdhsa_kernel {NAME}_kernel
  .amdhsa_next_free_vgpr {nv}
  .amdhsa_next_free_sgpr 102
  .amdhsa_accum_offset {nv}
  .amdhsa_group_segment_fixed_size 0
  .amdhsa_kernarg_size 104
  .amdhsa_user_sgpr_count 2
  .amdhsa_user_sgpr_kernarg_segment_ptr 1
  .amdhsa_system_sgpr_workgroup_id_x 1
.end_amdhsa_kernel
"""
open(OUT, "w").write(txt)
```

```python
import sys
sys.path.insert(0, "work")
from asmlib import Asm
NAME = "recurrent_scan__sliding_block_cached__dense_activation_gelu__decode"
DIAG = "--diag" in sys.argv
OUT = [a for a in sys.argv[1:] if not a.startswith("--")][0]
def opt(name, default):
    for x in sys.argv:
        if x.startswith("--" + name + "="): return int(x.split("=")[1])
    return default
NV1 = opt("nv1", 4)
GATEK = opt("gatek", 0)
WOLATE = opt("wolate", 0)
NOFAST = opt("nofast", 0)
TLB = opt("tlb", 0)
XNT = "nt" if opt("xnt", 0) else ""
QPRE = 0
OSLOW = opt("oslow", 0)
QMODE = opt("qmode", 0)
FD = opt("fd", 1)
FGAP = opt("fgap", 0)

WS_QA = 0x10000
WS_QB = 0x30000
WS_H = 0x50000
WS_S = 0x80000
WS_OA = 0x100000
WS_OB = 0x200000
WS_DIAG = 0x800000
L_WQ = 0x0000
L_W1 = 0x4000
L_XN = 0x6000
L_QS = 0x6400
L_MX = 0x6800
L_LS = 0x6810
L_FL = 0x6820
L_SP = 0x6900
L_OR = 0x8000
LDS_BYTES = L_OR + 8 * 3072
SPIN = 1 << 18

a = Asm()
header = open("cdna_kernels/" + NAME + ".s.ref").read().split("; Override launch")[0]
vLANE, vI16, vQ4 = "v1", "v2", "v3"
vM = ["v4", "v5", "v6", "v7"]
vN = ["v126", "v127"]
K0, V0, QB0, G0, PA0, W0 = 16, 32, 48, 64, 80, 108
X0 = 128
NVGPR = 168
vST, vST2 = "v168", "v169"
AC = 56
def vr(b, n=4): return f"v[{b}:{b+n-1}]"

def stamp(idx):
    if not DIAG: return
    a(f"s_memrealtime s[98:99]")
    a("s_waitcnt lgkmcnt(0)")
    a(f"v_writelane_b32 {vST}, s98, {idx}")
def count(idx):
    if not DIAG: return
    a(f"s_sub_u32 s101, {SPIN}, s100")
    a(f"v_writelane_b32 {vST}, s101, {idx}")
def diag_flush():
    if not DIAG: return
    a("s_mov_b64 exec, -1")
    a("s_lshl_b32 s7, s2, 3")
    a("s_add_u32 s7, s7, s5")
    a("s_lshl_b32 s7, s7, 8")
    a(f"s_add_u32 s7, s7, {WS_DIAG}")
    a("s_add_u32 s98, s14, s7")
    a("s_addc_u32 s99, s15, 0")
    a(f"v_lshlrev_b32 {vST2}, 2, {vLANE}")
    a(f"global_store_dword {vST2}, {vST}, s[98:99]")
def bf16_round_pair(dlo, dhi, slo, shi, tmp):
    a(f"v_cvt_pk_bf16_f32 {tmp}, {slo}, {shi}")
    a(f"v_lshlrev_b32 {dlo}, 16, {tmp}")
    a(f"v_and_b32 {dhi}, 0xffff0000, {tmp}")
def bf16_round(d, s):
    a(f"v_cvt_pk_bf16_f32 {d}, {s}, {s}")
    a(f"v_and_b32 {d}, 0xffff0000, {d}")
def dpp(op, d, s0, s1, ctrl):
    if op == "v_mov_b32": a(f"v_mov_b32_dpp {d}, {s0} {ctrl} row_mask:0xf bank_mask:0xf")
    else: a(f"{op}_dpp {d}, {s0}, {s1} {ctrl} row_mask:0xf bank_mask:0xf")
def row_allreduce(op, x):
    for r in (8, 4, 2, 1): dpp(op, x, x, x, f"row_ror:{r}")
def wave_allreduce(op, x, t):
    row_allreduce(op, x)
    a(f"v_mov_b32 {t}, {x}")
    a(f"v_permlane16_swap_b32 {x}, {t}")
    a(f"{op} {x}, {x}, {t}")
    a(f"v_mov_b32 {t}, {x}")
    a(f"v_permlane32_swap_b32 {x}, {t}")
    a(f"{op} {x}, {x}, {t}")
def sbase(dst, src, off):
    a(f"s_add_u32 s{dst}, s{src}, {off}")
    a(f"s_addc_u32 s{dst+1}, s{src+1}, 0")
def tagcheck(regs, t0="v12", t1="v13"):
    if len(regs) == 1:
        a(f"v_cmp_ne_u32 vcc, s6, v{regs[0]}"); return
    a(f"v_xor_b32 {t0}, s6, v{regs[0]}")
    i = 1
    while i < len(regs):
        a(f"v_xor_b32 {t1}, s6, v{regs[i]}")
        if i + 1 < len(regs):
            a(f"v_xor_b32 v{regs[i+1]}, s6, v{regs[i+1]}")
            a(f"v_or3_b32 {t0}, {t0}, {t1}, v{regs[i+1]}")
            i += 2
        else:
            a(f"v_or_b32 {t0}, {t0}, {t1}")
            i += 1
    a(f"v_cmp_ne_u32 vcc, 0, {t0}")
def pack24(dst, src):
    for n in range(3):
        a(f"v_perm_b32 v{dst+n}, v{src+n}, v{src+3}, s{88+n}")
    a(f"v_mov_b32 v{dst+3}, s6")

a(f"{NAME}_kernel:")
if DIAG: a("s_memrealtime s[100:101]")
a("s_cmp_ge_u32 s2, 256")
a("s_cbranch_scc1 L_end")
a("s_load_dwordx16 s[16:31], s[0:1], 0")
a("s_load_dwordx4 s[8:11], s[0:1], 64")
a("s_load_dwordx2 s[12:13], s[0:1], 80")
a("s_load_dwordx2 s[14:15], s[0:1], 96")
a(f"v_and_b32 {vLANE}, 63, v0")
a("v_lshrrev_b32 v8, 6, v0")
a(f"v_and_b32 {vI16}, 15, v0")
a(f"v_bfe_u32 {vQ4}, v0, 4, 2")
a("v_readfirstlane_b32 s5, v8")
a("s_and_b32 s3, s2, 7")
a("s_lshr_b32 s4, s2, 3")
if DIAG: a(f"v_mov_b32 {vST}, 0")
a(f"v_bfe_u32 v8, {vLANE}, 1, 3")
a(f"v_and_b32 v9, 1, {vLANE}")
a("v_lshlrev_b32 v9, 4, v9")
a(f"v_lshl_add_u32 v9, {vQ4}, 5, v9")
a("v_lshl_add_u32 v10, v8, 13, v9")
a("v_xor_b32 v11, 0x8000, v10")
a("v_add_u32 v11, 0x10000, v11")
a(f"v_lshlrev_b32 v13, 7, {vI16}")
a("v_and_b32 v13, 0x700, v13")
a(f"v_and_b32 v14, 1, {vI16}")
a("v_lshl_add_u32 v13, v14, 6, v13")
a(f"v_lshl_add_u32 v13, {vQ4}, 4, v13")
a(f"v_lshlrev_b32 v14, 4, {vLANE}")
a("s_lshl_b32 s96, s3, 5")
a("s_add_u32 s96, s96, s4")
a("s_lshr_b32 s32, s4, 2")
a("s_lshl_b32 s32, s32, 7")
a("s_lshl_b32 s33, s3, 10")
a("s_add_u32 s32, s32, s33")
a("s_and_b32 s97, s4, 3")
a("s_lshl_b32 s33, s97, 20")
a("s_add_u32 s32, s32, s33")
a("s_lshl_b32 s33, s5, 17")
a("s_add_u32 s32, s32, s33")
a("s_lshl_b32 s37, s3, 23")
a("s_lshl_b32 s38, s4, 15")
a("s_add_u32 s37, s37, s38")
a("s_lshl_b32 s38, s5, 12")
a("s_add_u32 s37, s37, s38")
a("s_add_u32 s37, s37, 0x700000")
a("s_lshl_b32 s39, s5, 11")
a("s_mov_b32 m0, s39")
a("s_add_u32 s39, s39, 1024")
a("s_lshl_b32 s41, s96, 12")
a("s_and_b32 s42, s5, 3")
a("s_lshl_b32 s42, s42, 10")
a("s_add_u32 s41, s41, s42")
a(f"s_add_u32 s41, s41, {WS_OA}")
a("v_mul_u32_u24 v124, 3584, v8")
a("v_add_u32 v124, v124, v9")
a("v_xor_b32 v125, 4, v8")
a("v_add_u32 v125, 8, v125")
a("v_mul_u32_u24 v125, 3584, v125")
a("v_add_u32 v125, v125, v9")
for i in range(4): a(f"v_mov_b32 v{V0+i}, 0")
a("s_and_b32 s36, s5, 3")
a("s_min_u32 s34, s96, 223")
a("s_lshr_b32 s35, s34, 3")
a("s_lshl_b32 s35, s35, 7")
a("s_and_b32 s34, s34, 7")
a("s_lshl_b32 s34, s34, 2")
a("s_add_u32 s34, s34, s36")
a(f"s_mul_i32 s34, s34, {16*3584}")
a("s_add_u32 s34, s34, s35")
a("s_lshl_b32 s40, s36, 11")
a(f"s_add_u32 s40, s40, {L_W1}")
a("s_cmp_lg_u32 s5, 0")
a("s_waitcnt lgkmcnt(0)")
a("s_cbranch_scc1 L_nox")
a(f"global_load_dwordx4 {vr(W0)}, v14, s[16:17] {XNT}")
a("L_nox:")
sbase(22, 22, "s32")
a("global_load_lds_dwordx4 v10, s[22:23] nt")
a("s_mov_b32 m0, s39")
sbase(18, 18, "s37")
a("global_load_lds_dwordx4 v11, s[22:23] nt")
a("s_load_dword s6, s[14:15], 0")
if TLB:
    a("s_cmp_lg_u32 s5, 6")
    a("s_cbranch_scc1 L_notlb")
    a("s_load_dword s68, s[18:19], 0")
    sbase(70, 20, "s37"); a("s_load_dword s69, s[70:71], 0")
    a("s_lshl_b32 s56, s96, 14"); sbase(72, 24, "s56"); a("s_load_dword s74, s[72:73], 0")
    a("s_load_dword s75, s[8:9], 0")
    a("s_load_dword s76, s[28:29], 0")
    a("s_load_dword s77, s[30:31], 0")
    a("s_load_dword s78, s[10:11], 0")
    a("s_load_dword s79, s[12:13], 0")
    a("L_notlb:")
a("s_getreg_b32 s86, hwreg(HW_REG_XCC_ID, 0, 4)")
if NOFAST: a("s_add_u32 s86, s86, s2")
a("s_cmp_lg_u32 s5, 7")
a("s_cbranch_scc1 L_nopf")
a("s_getpc_b64 s[54:55]")
a("s_and_b32 s56, s4, 7")
a("s_lshl_b32 s56, s56, 10")
sbase(54, 54, "s56")
a(f"global_load_dwordx4 {vr(G0)}, v14, s[54:55] {XNT}")
a("L_nopf:")
a("s_cmp_lt_u32 s5, 4")
a("s_cbranch_scc1 L_prea")
a("s_mov_b32 m0, s40")
sbase(28, 28, "s34")
sbase(42, 14, "s41")
a("s_cmp_ge_u32 s96, 224")
a("s_cbranch_scc1 L_now1")
a("global_load_lds_dwordx4 v124, s[28:29] nt")
a("s_add_u32 s40, s40, 1024")
a("s_mov_b32 m0, s40")
a("s_nop 0")
a("global_load_lds_dwordx4 v125, s[28:29] nt")
a("L_now1:")
a(f"global_store_dwordx4 v14, {vr(V0)}, s[42:43]")
a("s_branch L_nopre")
a("L_prea:")
a("s_lshl_b32 s32, s3, 14")
a("s_lshl_b32 s33, s97, 12")
a("s_add_u32 s32, s32, s33")
a("s_lshr_b32 s33, s4, 2")
a("s_lshl_b32 s33, s33, 9")
a("s_add_u32 s32, s32, s33")
a("s_lshl_b32 s33, s5, 7")
a("s_add_u32 s32, s32, s33")
a(f"s_add_u32 s32, s32, {WS_QA}")
sbase(42, 14, "s32")
if QPRE:
    a("s_mov_b64 exec, 0xff")
    a(f"global_store_dwordx4 v14, {vr(V0)}, s[42:43]")
    a("s_mov_b64 exec, -1")
a("L_nopre:")
if DIAG: a("s_memrealtime s[84:85]")
a("s_barrier")
for kh in range(2):
    for hf in range(2):
        a(f"global_load_dwordx4 {vr(K0+8*kh+4*hf)}, v13, s[18:19] offset:{kh*2048+hf*128} nt")
if DIAG: a(f"v_writelane_b32 {vST}, s100, 0")
sbase(20, 20, "s37")
a(f"v_lshlrev_b32 v15, 9, {vQ4}")
a(f"v_lshl_add_u32 v15, {vI16}, 4, v15")
a(f"v_and_b32 v8, 1, {vI16}")
a("v_cmp_eq_u32 vcc, 1, v8")
a("v_mov_b32 v9, 0xffff")
a("v_mov_b32 v10, 0xffff0000")
a("v_cndmask_b32 v9, v9, v10, vcc")
a("s_mov_b64 s[92:93], vcc")
a(f"v_bfe_u32 v8, {vI16}, 1, 2")
for d in range(4):
    a(f"v_cmp_eq_u32 vcc, {d}, v8")
    a(f"v_cndmask_b32 {vM[d]}, 0, v9, vcc")
a(f"v_or_b32 {vN[0]}, {vM[0]}, {vM[2]}")
a(f"v_or_b32 {vN[1]}, {vM[1]}, {vM[3]}")
for p in (44, 46, 60, 62, 64, 66): a(f"s_mov_b64 s[{p}:{p+1}], s[14:15]")
for r in (99, 100, 101, 102, 103): a(f"v_mov_b32 v{r}, 0")
a("s_mov_b32 s88, 0x07060503")
a("s_mov_b32 s89, 0x07060502")
a("s_mov_b32 s90, 0x07060501")
a("s_cmp_lg_u32 s5, 0")
a("s_cbranch_scc1 L_noln")
a(f"s_waitcnt vmcnt({6 + QPRE})")
if DIAG:
    a("s_memrealtime s[94:95]")
X = [f"v{V0+i}" for i in range(8)]
for d in range(4):
    a(f"v_lshlrev_b32 {X[2*d]}, 16, v{W0+d}")
    a(f"v_and_b32 {X[2*d+1]}, 0xffff0000, v{W0+d}")
a(f"v_add_f32 v8, {X[0]}, {X[1]}")
a(f"v_add_f32 v9, {X[2]}, {X[3]}")
a(f"v_add_f32 v10, {X[4]}, {X[5]}")
a(f"v_add_f32 v11, {X[6]}, {X[7]}")
a("v_add_f32 v8, v8, v9")
a("v_add_f32 v10, v10, v11")
a("v_add_f32 v8, v8, v10")
wave_allreduce("v_add_f32", "v8", "v9")
a("v_mul_f32 v8, 0x3b000000, v8")
D = [f"v{V0+8+i}" for i in range(8)]
for i in range(8): a(f"v_sub_f32 {D[i]}, {X[i]}, v8")
a(f"v_mul_f32 v10, {D[0]}, {D[0]}")
for i in range(1, 8): a(f"v_fmac_f32 v10, {D[i]}, {D[i]}")
wave_allreduce("v_add_f32", "v10", "v9")
a("v_mul_f32 v10, 0x3b000000, v10")
bf16_round("v10", "v10")
a("v_add_f32 v10, 0x3727c5ac, v10")
bf16_round("v10", "v10")
a("v_sqrt_f32 v10, v10")
bf16_round("v10", "v10")
a("v_rcp_f32 v10, v10")
bf16_round("v8", "v8")
for i in range(8): a(f"v_sub_f32 {D[i]}, {X[i]}, v8")
for d in range(4): bf16_round_pair(D[2*d], D[2*d+1], D[2*d], D[2*d+1], "v9")
for i in range(8): a(f"v_mul_f32 {D[i]}, {D[i]}, v10")
for d in range(4): a(f"v_cvt_pk_bf16_f32 v{W0+d}, {D[2*d]}, {D[2*d+1]}")
a(f"ds_write_b128 v14, {vr(W0)} offset:{L_XN}")
a("v_mov_b32 v8, 0")
for i in range(4): a(f"v_mov_b32 v{W0+4+i}, 0xff800000")
for i in range(4): a(f"v_mov_b32 v{W0+8+i}, 0")
a("s_mov_b64 exec, 1")
a(f"ds_write_b128 v8, {vr(W0+4)} offset:{L_MX}")
a(f"ds_write_b128 v8, {vr(W0+8)} offset:{L_LS}")
a(f"ds_write_b32 v8, v{W0+8} offset:{L_FL}")
a("s_mov_b64 exec, -1")
a("L_noln:")
a("s_and_b32 s32, s5, 3")
a("s_lshl_b32 s32, s32, 8")
a(f"v_lshlrev_b32 v8, 10, {vQ4}")
a(f"v_lshl_add_u32 v8, {vI16}, 3, v8")
a("v_add_u32 v8, s32, v8")
a(f"v_and_b32 v9, 1, {vQ4}")
a("v_lshlrev_b32 v9, 7, v9")
a("v_add_u32 v10, v8, v9")
a("v_xor_b32 v9, 128, v9")
a("v_add_u32 v11, v8, v9")
a(f"v_lshlrev_b32 v12, 4, {vQ4}")
a(f"v_lshlrev_b32 v13, 3, {vLANE}")
a("s_waitcnt lgkmcnt(0)")
if DIAG:
    a(f"v_writelane_b32 {vST}, s94, 15")
    a(f"v_writelane_b32 {vST}, s84, 23")
stamp(16)
a("s_lshr_b32 s6, s6, 1")
a("s_mul_i32 s6, s6, 0x5DEECE6D")
a("s_add_u32 s6, s6, 0xB")
a("s_lshl_b32 s6, s6, 1")
a("s_or_b32 s6, s6, 1")
def vload(n):
    kh, aa = n >> 1, n & 1
    a(f"global_load_dwordx4 {vr(V0+4*n)}, v15, s[20:21] offset:{kh*2048+aa*256} nt")
def partial(nsteps, lbase, XA):
    for t in range(nsteps):
        a(f"ds_read_b128 {vr(XA+4*t)}, v12 offset:{L_XN + t*64}")
        b = PA0 + 4*t
        a(f"ds_read_b64_tr_b16 v[{b}:{b+1}], v10 offset:{lbase + t*4096}")
        a(f"ds_read_b64_tr_b16 v[{b+2}:{b+3}], v11 offset:{lbase + t*4096}")
    if nsteps == 4: a(f"v_mov_b32 v{QB0+2}, s86")
    else: a(f"v_mov_b32 v{QB0+1}, s6")
    a(f"v_mov_b32 v{QB0+3}, s6")
    for t in range(nsteps):
        a(f"s_waitcnt lgkmcnt({3*(nsteps-1-t)})")
        c = "0" if t == 0 else vr(AC)
        a(f"v_mfma_f32_16x16x32_bf16 {vr(AC)}, {vr(XA+4*t)}, {vr(PA0+4*t)}, {c}")
def partial_fin(k):
    a(f"v_mov_b32 v{QB0}, v{AC}")
    dpp("v_mov_b32", f"v{QB0+k}", f"v{AC}", None, "quad_perm:[1,0,3,2]")
    a("s_mov_b64 exec, 0x5555")
def woload():
    for rg in range(4):
        a(f"global_load_dwordx4 {vr(W0+4*rg)}, v124, s[24:25] offset:{rg*1024} nt")
HG = X0 + 28
B1R = X0 + 36
def hgather():
    a(f"global_load_dwordx4 {vr(HG)}, v{W0}, s[44:45] sc1")
    a(f"global_load_dwordx4 {vr(HG+4)}, v{W0}, s[44:45] offset:16 sc1")
def w2load():
    for rg in range(7):
        if rg < 4: a(f"global_load_dwordx4 {vr(X0+4*rg)}, v{W0+1}, s[8:9] offset:{rg*1024} nt")
        else: a(f"global_load_dwordx4 {vr(X0+4*rg)}, v{W0+2}, s[8:9] offset:{(rg-4)*1024} nt")
    for n in range(3):
        a(f"global_load_ushort v{B1R+n}, v{W0+3}, s[30:31] offset:{2*n} {XNT}")
    a(f"global_load_ushort v{B1R+3}, v{W0+4}, s[30:31] offset:6 {XNT}")
vQA, vHD, vOW, vA1, vA2, vA3 = "v96", "v97", "v98", "v99", "v100", "v101"
a(f"v_lshrrev_b32 v8, 2, {vI16}")
a(f"v_lshlrev_b32 {vHD}, 2, v8")
a("v_lshlrev_b32 v8, 8, v8")
a(f"v_lshl_add_u32 v8, {vQ4}, 4, v8")
a(f"v_and_b32 v9, 1, {vI16}")
a(f"v_lshl_add_u32 {vQA}, v9, 6, v8")
a("s_mul_i32 s36, s5, 3072")
a(f"v_mul_u32_u24 {vOW}, 768, {vQ4}")
a(f"v_lshl_add_u32 {vOW}, {vI16}, 4, {vOW}")
a(f"v_add_u32 {vOW}, s36, {vOW}")
a("s_mov_b32 s80, 0x3db504f3")
a("s_mov_b32 s81, 0x3fb8aa3b")
a("s_mov_b32 s82, 0x11111111")
a("s_mov_b32 s83, 0x11111111")
a("s_cmp_ge_u32 s5, 4")
a("s_cbranch_scc1 L_B0b")
a(f"v_lshrrev_b32 v8, 1, {vI16}")
a("v_lshlrev_b32 v8, 7, v8")
a(f"v_lshl_add_u32 v8, {vQ4}, 5, v8")
a(f"v_lshl_add_u32 {vA1}, v9, 4, v8")
a(f"v_lshlrev_b32 v8, 5, {vI16}")
a(f"v_lshl_add_u32 v8, {vQ4}, 4, v8")
a("s_lshl_b32 s32, s5, 9")
a(f"v_add_u32 {vA2}, s32, v8")
a("s_lshl_b32 s32, s97, 15")
a("s_lshr_b32 s33, s96, 2")
a("s_lshl_b32 s33, s33, 7")
a("s_add_u32 s32, s32, s33")
a(f"s_add_u32 s32, s32, {WS_S}")
sbase(60, 14, "s32")
a(f"v_lshrrev_b32 v8, 5, {vLANE}")
a(f"v_lshlrev_b32 {vA3}, 17, v8")
a("v_mul_u32_u24 v8, 1536, v8")
a(f"v_lshl_add_u32 v102, {vLANE}, 4, v8")
a(f"v_bfe_u32 v8, {vLANE}, 3, 2")
a(f"v_lshl_add_u32 {vA3}, v8, 13, {vA3}")
a(f"v_and_b32 v8, 7, {vLANE}")
a(f"v_lshl_add_u32 {vA3}, v8, 4, {vA3}")
a("s_lshl_b32 s32, s97, 8")
a("v_add_u32 v12, s32, v12")
a("s_lshl_b32 s32, s3, 14")
a("s_lshl_b32 s33, s5, 10")
a("s_add_u32 s32, s32, s33")
a(f"s_add_u32 s32, s32, {WS_QA + 4096}")
sbase(44, 14, "s32")
sbase(46, 44, 8192)
a("s_and_b32 s32, s4, 28")
a("s_add_u32 s32, s32, s5")
a("s_lshl_b32 s33, s3, 5")
a("s_add_u32 s91, s32, s33")
a("s_lshl_b32 s32, s91, 14")
a("s_lshl_b32 s33, s97, 8")
a("s_add_u32 s32, s32, s33")
sbase(24, 24, "s32")
a("s_lshl_b32 s32, s91, 12")
a(f"s_add_u32 s32, s32, {WS_OA}")
sbase(62, 14, "s32")
a(f"v_lshlrev_b32 v124, 12, {vQ4}")
a(f"v_lshl_add_u32 v124, {vI16}, 4, v124")
a("s_waitcnt vmcnt(4)")
stamp(2)
a("s_barrier")
partial(4, L_WQ, G0)
a(f"v_lshlrev_b32 v10, 4, {vLANE}")
partial_fin(1)
a(f"global_store_dwordx4 v13, {vr(QB0)}, s[42:43] sc1")
a("s_mov_b64 exec, -1")
stamp(4)
a("s_barrier")
NST = 1
for n in range(NV1): vload(n)
if GATEK: a(f"s_waitcnt vmcnt({NV1 + NST})")
stamp(1)
a("s_barrier")
def qgather(fl="sc1"):
    a(f"global_load_dwordx4 {vr(G0)}, v10, s[44:45] offset:-4096 {fl}")
    a(f"global_load_dwordx4 {vr(G0+4)}, v10, s[44:45] {fl}")
    a(f"global_load_dwordx4 {vr(G0+8)}, v10, s[46:47] offset:-4096 {fl}")
    a(f"global_load_dwordx4 {vr(G0+12)}, v10, s[46:47] {fl}")
qgather({0: "sc1", 1: "sc1", 2: "", 3: "nt", 4: "sc0"}[QMODE])
stamp(22)
a("s_barrier")
for n in range(NV1, 4): vload(n)
if NV1 < 4: a("s_barrier")
if WOLATE == 0: woload()
stamp(5)
a(f"s_mov_b32 s100, {SPIN}")
a("s_lshl_b32 s32, s5, 8")
a(f"v_lshl_add_u32 v9, {vLANE}, 2, s32")
if DIAG and NV1 == 4 and WOLATE == 0:
    a("s_waitcnt vmcnt(13)")
    stamp(17)
    a("s_waitcnt vmcnt(8)")
    stamp(18)
a(f"s_waitcnt vmcnt({4 - NV1 + (4 if WOLATE == 0 else 0)})")
stamp(19)
a("s_branch L_qchk")
a("L_qpoll:")
qgather()
a("s_waitcnt vmcnt(0)")
a("L_qchk:")
tagcheck([G0 + 3 + 4*n for n in range(4)])
a("s_sub_u32 s100, s100, 1")
a("s_cbranch_scc1 L_qgot")
a("s_cbranch_vccnz L_qpoll")
a("L_qgot:")
a(f"v_pk_add_f32 v[{G0}:{G0+1}], v[{G0}:{G0+1}], v[{G0+4}:{G0+5}]")
a(f"v_pk_add_f32 v[{G0+8}:{G0+9}], v[{G0+8}:{G0+9}], v[{G0+12}:{G0+13}]")
a(f"v_xor_b32 v12, s86, v{G0+2}")
a(f"v_pk_add_f32 v[{G0}:{G0+1}], v[{G0}:{G0+1}], v[{G0+8}:{G0+9}]")
a(f"v_xor_b32 v13, s86, v{G0+6}")
a(f"v_xor_b32 v{G0+10}, s86, v{G0+10}")
a(f"v_cvt_pk_bf16_f32 v8, v{G0}, v{G0+1}")
a(f"v_xor_b32 v{G0+14}, s86, v{G0+14}")
a(f"ds_write_b32 v9, v8 offset:{L_QS}")
a(f"v_or3_b32 v12, v12, v13, v{G0+10}")
a(f"v_or_b32 v12, v12, v{G0+14}")
a("v_cmp_ne_u32 vcc, 0, v12")
a("s_cbranch_vccz L_same")
a("v_mov_b32 v12, 0")
a("v_mov_b32 v13, 1")
a(f"ds_write_b32 v12, v13 offset:{L_FL}")
a("L_same:")
if WOLATE == 1: woload()
count(20)
a(f"s_mov_b32 s87, {4 if WOLATE < 2 else 0}")
a("s_branch L_B1")
a("L_B0b:")
a("s_and_b32 s33, s96, 7")
a("s_lshl_b32 s32, s33, 7")
a("v_add_u32 v12, s32, v12")
a("s_mul_i32 s32, s33, 16512")
a("s_lshr_b32 s33, s96, 3")
a("s_lshl_b32 s33, s33, 9")
a("s_add_u32 s32, s32, s33")
a("s_and_b32 s36, s5, 3")
a("s_lshl_b32 s33, s36, 7")
a("s_add_u32 s32, s32, s33")
a(f"s_add_u32 s32, s32, {WS_H}")
sbase(42, 14, "s32")
a("s_lshr_b32 s7, s96, 2")
a("s_mul_i32 s7, s7, 28")
a("s_lshl_b32 s32, s7, 3")
a(f"s_add_u32 s32, s32, {WS_H}")
sbase(44, 14, "s32")
a("s_lshl_b32 s32, s7, 10")
a("s_lshl_b32 s33, s97, 8")
a("s_add_u32 s32, s32, s33")
sbase(8, 8, "s32")
a("s_lshl_b32 s32, s7, 1")
sbase(30, 30, "s32")
a(f"v_and_b32 v{W0}, 7, {vI16}")
a(f"v_mul_u32_u24 v{W0}, 16512, v{W0}")
a(f"v_mul_u32_u24 v{W0+1}, 7, {vQ4}")
a(f"v_lshrrev_b32 v{W0+3}, 3, {vI16}")
a(f"v_lshl_add_u32 v{W0+3}, v{W0+3}, 2, v{W0+1}")
a(f"v_lshl_add_u32 v{W0}, v{W0+3}, 3, v{W0}")
a(f"v_lshlrev_b32 v{W0+3}, 1, v{W0+3}")
a(f"v_min_u32 v{W0+4}, 48, v{W0+3}")
a(f"v_lshlrev_b32 v{W0+1}, 10, v{W0+1}")
a(f"v_lshl_add_u32 v{W0+1}, {vI16}, 4, v{W0+1}")
a(f"v_add_u32 v{W0+2}, 4096, v{W0+1}")
a("s_mul_i32 s37, s36, 768")
a(f"v_bfe_u32 v9, {vLANE}, 1, 1")
a("v_mul_u32_u24 v9, 384, v9")
a(f"v_lshrrev_b32 v8, 2, {vLANE}")
a("v_lshl_add_u32 v9, v8, 4, v9")
a(f"v_and_b32 v8, 1, {vLANE}")
a("v_lshl_add_u32 v9, v8, 3, v9")
a(f"v_add_u32 {vA1}, s37, v9")
a(f"v_lshrrev_b32 v9, 3, {vLANE}")
a("v_lshlrev_b32 v9, 12, v9")
a(f"v_and_b32 v8, 7, {vLANE}")
a(f"v_lshl_add_u32 {vA2}, v8, 4, v9")
a("s_lshl_b32 s38, s36, 2")
a(f"v_mov_b32 {vA3}, s38")
a("s_lshl_b32 s32, s3, 17")
a("s_lshl_b32 s37, s36, 15")
a("s_add_u32 s32, s32, s37")
a("s_lshl_b32 s37, s4, 7")
a("s_add_u32 s32, s32, s37")
a(f"s_add_u32 s32, s32, {WS_OA}")
sbase(60, 14, "s32")
sbase(62, 60, WS_OB - WS_OA)
a("s_and_b32 s32, s4, 15")
a("s_lshl_b32 s33, s3, 4")
a("s_add_u32 s32, s32, s33")
a("s_lshr_b32 s33, s32, 3")
a("s_lshl_b32 s33, s33, 13")
a("s_and_b32 s34, s32, 7")
a("s_lshl_b32 s34, s34, 4")
a("s_add_u32 s33, s33, s34")
a(f"s_add_u32 s33, s33, {WS_S}")
sbase(64, 14, "s33")
sbase(66, 64, 131072)
a("s_lshl_b32 s33, s32, 3")
sbase(16, 16, "s33")
sbase(10, 10, "s33")
sbase(12, 12, "s33")
vFO, vFG, vFX, vFB = "v102", "v103", "v104", "v105"
a(f"v_and_b32 v8, 1, {vQ4}")
a("v_lshlrev_b32 v8, 2, v8")
a(f"v_and_b32 v9, 2, {vQ4}")
a(f"v_add_u32 {vFO}, v8, v9")
a(f"v_lshlrev_b32 {vFG}, 7, {vLANE}")
a("s_waitcnt vmcnt(4)")
stamp(2)
a("s_barrier")
partial(2, L_W1, G0)
partial_fin(2)
a(f"global_store_dwordx4 v13, {vr(QB0)}, s[42:43] sc1")
a("s_mov_b64 exec, -1")
stamp(4)
a("s_barrier")
for n in range(NV1): vload(n)
if GATEK: a(f"s_waitcnt vmcnt({NV1 + 1})")
stamp(1)
a("s_barrier")
a("s_barrier")
for n in range(NV1, 4): vload(n)
if NV1 < 4: a("s_barrier")
a("s_mov_b32 s87, 0")
a("s_cmp_lg_u32 s5, 4")
a("s_cbranch_scc1 L_now2")
hgather()
w2load()
a("s_mov_b32 s87, 13")
a("L_now2:")
a("s_cmp_lg_u32 s5, 5")
a("s_cbranch_scc1 L_nof")
a(f"global_load_ushort {vFX}, {vFO}, s[16:17] {XNT}")
a(f"global_load_ushort {vFB}, {vFO}, s[10:11] {XNT}")
a(f"global_load_dwordx4 {vr(X0)}, {vFG}, s[66:67] sc1")
a(f"global_load_dwordx4 {vr(X0+4)}, {vFG}, s[64:65] sc1")
a("s_mov_b32 s87, 4")
a("L_nof:")
stamp(5)
a("s_cmp_eq_u32 s87, 13")
a("s_cbranch_scc1 L_kw13")
a("s_cmp_eq_u32 s87, 4")
a("s_cbranch_scc1 L_kw4")
a("s_waitcnt vmcnt(5)")
a("L_kw4:")
a("s_waitcnt vmcnt(9)")
a("L_kw13:")
a("s_waitcnt vmcnt(18)")
a("L_B1:")
a("s_waitcnt lgkmcnt(0)")
stamp(6)
a("s_barrier")
for hf in range(2):
    a(f"ds_read_b128 {vr(QB0+4*hf)}, {vQA} offset:{L_QS + hf*128}")
a("v_mov_b32 v8, 0")
a(f"ds_read_b32 v11, v8 offset:{L_FL}")
DD = lambda kh: G0 + 4*kh
for hf in range(2):
    a(f"s_waitcnt lgkmcnt({2-hf})")
    for kh in range(2):
        c = "0" if hf == 0 else vr(DD(kh))
        a(f"v_mfma_f32_16x16x32_bf16 {vr(DD(kh))}, {vr(K0+8*kh+4*hf)}, {vr(QB0+4*hf)}, {c}")
a("s_waitcnt lgkmcnt(0)")
a("v_readfirstlane_b32 s85, v11")
if OSLOW: a("s_mov_b32 s85, 1")
S = [f"v{G0+8+n}" for n in range(4)]
for kh in range(2):
    for aa in range(2):
        d = DD(kh) + 2*aa
        a(f"v_cndmask_b32 {S[kh*2+aa]}, v{d}, v{d+1}, s[92:93]")
for n in range(4): dpp("v_add_f32", S[n], S[n], S[n], "quad_perm:[1,0,3,2]")
a(f"v_cvt_pk_bf16_f32 v9, {S[0]}, {S[1]}")
a(f"v_cvt_pk_bf16_f32 v10, {S[2]}, {S[3]}")
a(f"v_lshlrev_b32 {S[0]}, 16, v9")
a(f"v_and_b32 {S[1]}, 0xffff0000, v9")
a(f"v_lshlrev_b32 {S[2]}, 16, v10")
a(f"v_and_b32 {S[3]}, 0xffff0000, v10")
for n in range(4): a(f"v_mul_f32 {S[n]}, s80, {S[n]}")
a(f"v_cvt_pk_bf16_f32 v9, {S[0]}, {S[1]}")
a(f"v_cvt_pk_bf16_f32 v10, {S[2]}, {S[3]}")
a(f"v_lshlrev_b32 {S[0]}, 16, v9")
a(f"v_and_b32 {S[1]}, 0xffff0000, v9")
a(f"v_lshlrev_b32 {S[2]}, 16, v10")
a(f"v_and_b32 {S[3]}, 0xffff0000, v10")
a(f"v_max3_f32 v10, {S[0]}, {S[1]}, {S[2]}")
a(f"v_max_f32 v10, v10, {S[3]}")
a("s_mov_b64 exec, s[82:83]")
a(f"ds_max_f32 {vHD}, v10 offset:{L_MX}")
a("s_mov_b64 exec, -1")
waits = [0, 4, 13]
for wv in waits[1:]:
    a(f"s_cmp_eq_u32 s87, {wv}")
    a(f"s_cbranch_scc1 L_vw{wv}")
for wv in waits:
    if wv: a(f"L_vw{wv}:")
    a(f"s_waitcnt vmcnt({wv})")
a("s_waitcnt lgkmcnt(0)")
stamp(7)
a("s_barrier")
a(f"ds_read_b32 v10, {vHD} offset:{L_MX}")
a("s_waitcnt lgkmcnt(0)")
a("v_mul_f32 v10, s81, v10")
for n in range(4): a(f"v_fma_f32 {S[n]}, {S[n]}, s81, -v10")
for n in range(4): a(f"v_exp_f32 {S[n]}, {S[n]}")
ACC = [QB0, QB0 + 4]
for n in range(4):
    a(f"v_cvt_pk_bf16_f32 v{G0+12+n}, {S[n]}, {S[n]}")
for n in range(4):
    for d in range(2): a(f"v_and_b32 v{PA0+2*n+d}, v{G0+12+n}, {vN[d]}")
    if n >= 1:
        m = n - 1
        for hl in range(2):
            c = "0" if m == 0 else vr(ACC[hl])
            a(f"v_mfma_f32_16x16x16_bf16 {vr(ACC[hl])}, {vr(PA0+2*m, 2)}, {vr(V0+4*m+2*hl, 2)}, {c}")
a(f"v_add_f32 v12, {S[0]}, {S[1]}")
a(f"v_add_f32 v13, {S[2]}, {S[3]}")
for hl in range(2):
    a(f"v_mfma_f32_16x16x16_bf16 {vr(ACC[hl])}, {vr(PA0+6, 2)}, {vr(V0+12+2*hl, 2)}, {vr(ACC[hl])}")
a("v_add_f32 v10, v12, v13")
a("s_mov_b64 exec, s[82:83]")
a(f"ds_add_f32 {vHD}, v10 offset:{L_LS}")
a("s_mov_b64 exec, -1")
a("v_mov_b32 v35, s6")
a("s_cmp_lt_u32 s5, 4")
for hl in range(2):
    a(f"ds_write_b128 {vOW}, {vr(ACC[hl])} offset:{L_OR + hl*384}")
a(f"s_mov_b32 s100, {SPIN}")
a("s_waitcnt lgkmcnt(0)")
stamp(9)
if DIAG: a("s_cmp_lt_u32 s5, 4")
a("s_barrier")
a("s_cbranch_scc1 L_wo")
a(f"ds_read_b32 v11, {vA3} offset:{L_LS}")
a(f"ds_read_b32 v12, {vA3} offset:{L_MX}")
for w in range(8):
    a(f"ds_read_b64 v[{16+2*w}:{17+2*w}], {vA1} offset:{L_OR + w*3072}")
a("s_waitcnt lgkmcnt(8)")
a("v_log_f32 v13, v11")
a("v_rcp_f32 v11, v11")
a("v_fma_f32 v34, v12, s81, v13")
a("s_waitcnt lgkmcnt(4)")
a("v_pk_add_f32 v[16:17], v[16:17], v[18:19]")
a("v_pk_add_f32 v[20:21], v[20:21], v[22:23]")
a("s_waitcnt lgkmcnt(0)")
a("v_pk_add_f32 v[24:25], v[24:25], v[26:27]")
a("v_pk_add_f32 v[28:29], v[28:29], v[30:31]")
a("v_pk_add_f32 v[16:17], v[16:17], v[20:21]")
a("v_pk_add_f32 v[24:25], v[24:25], v[28:29]")
a("s_cmp_lg_u32 s85, 0")
a("v_pk_add_f32 v[16:17], v[16:17], v[24:25]")
a("v_mul_f32 v32, v16, v11")
a("v_mul_f32 v33, v17, v11")
a("s_cbranch_scc1 L_oslow")
a(f"global_store_dwordx4 {vA2}, v[32:35], s[60:61]")
a("s_branch L_opubd")
a("L_oslow:")
a(f"global_store_dwordx4 {vA2}, v[32:35], s[62:63] sc1")
a("L_opubd:")
stamp(10)
a("s_cmp_eq_u32 s5, 4")
a("s_cbranch_scc1 L_ffn2")
a("s_cmp_lg_u32 s5, 5")
a("s_cbranch_scc1 L_done")
a("s_cmp_lt_u32 s4, 16")
a("s_cbranch_scc1 L_final")
a("L_done:")
diag_flush()
a("s_endpgm")
a("L_ffn2:")
a(f"v_cmp_gt_u32 s[40:41], 8, {vI16}")
a("s_waitcnt vmcnt(1)")
a("s_branch L_hchk")
a("L_hpoll:")
hgather()
a("s_waitcnt vmcnt(0)")
a("L_hchk:")
a("v_mov_b32 v14, s6")
a(f"v_cndmask_b32 v14, v14, v{HG+7}, s[40:41]")
tagcheck([HG+1, HG+3, HG+5, 14])
a("s_sub_u32 s100, s100, 1")
a("s_cbranch_scc1 L_hgot")
a("s_cbranch_vccnz L_hpoll")
a("L_hgot:")
H = [f"v{HG+2*n}" for n in range(4)]
for ctrl in ("quad_perm:[1,0,3,2]", "quad_perm:[2,3,0,1]", "row_half_mirror"):
    for n in range(4): dpp("v_add_f32", H[n], H[n], H[n], ctrl)
a("v_mov_b32 v30, 0x3d372713")
T4 = [f"v{16+n}" for n in range(4)]
for n in range(4): a(f"v_lshlrev_b32 v{B1R+n}, 16, v{B1R+n}")
for n in (0, 2): bf16_round_pair(H[n], H[n+1], H[n], H[n+1], "v9")
for n in range(4): a(f"v_add_f32 {H[n]}, {H[n]}, v{B1R+n}")
for n in (0, 2): bf16_round_pair(H[n], H[n+1], H[n], H[n+1], "v9")
for n in range(4): a(f"v_mul_f32 {T4[n]}, {H[n]}, {H[n]}")
for n in range(4): a(f"v_fma_f32 {T4[n]}, {T4[n]}, v30, 1.0")
for n in range(4): a(f"v_mul_f32 {T4[n]}, {T4[n]}, {H[n]}")
for n in range(4): a(f"v_mul_f32 {T4[n]}, 0xc0135761, {T4[n]}")
for n in range(4): a(f"v_exp_f32 {T4[n]}, {T4[n]}")
for n in range(4): a(f"v_add_f32 {T4[n]}, 1.0, {T4[n]}")
for n in range(4): a(f"v_rcp_f32 {T4[n]}, {T4[n]}")
for n in range(4): a(f"v_mul_f32 {H[n]}, {H[n]}, {T4[n]}")
for n in range(4): a(f"v_cvt_pk_bf16_f32 v{20+n}, {H[n]}, {H[n]}")
for n in range(3): dpp("v_mov_b32", f"v{24+n}", f"v{20+n}", None, "row_ror:8")
for rg in range(7):
    for d in range(4): a(f"v_and_b32 v{G0+4*rg+d}, v{20+rg}, {vM[d]}")
for rg in range(7):
    c = "0" if rg == 0 else vr(AC)
    a(f"v_mfma_f32_16x16x32_bf16 {vr(AC)}, {vr(G0+4*rg)}, {vr(X0+4*rg)}, {c}")
a(f"v_lshlrev_b32 v10, 5, {vI16}")
a(f"v_lshl_add_u32 v10, {vQ4}, 4, v10")
a("s_mov_b32 exec_hi, 0")
a(f"ds_write_b128 v10, {vr(AC)} offset:{L_SP + 2048}")
a("s_waitcnt lgkmcnt(0)")
stamp(11)
diag_flush()
a("s_endpgm")
a("L_wo:")
if WOLATE == 2: woload()
a("s_cmp_eq_u32 s85, 0")
a("s_cbranch_scc1 L_opoll")
sbase(62, 62, WS_OB - WS_OA)
OG0 = 16
a("L_opoll:")
for u in range(4):
    a(f"global_load_dwordx4 {vr(OG0+4*u)}, {vA1}, s[62:63] offset:{u*1024} sc1")
a("s_sub_u32 s100, s100, 1")
a("s_cbranch_scc1 L_ogot")
a("s_waitcnt vmcnt(0)")
tagcheck([OG0 + 3 + 4*n for n in range(4)])
a("s_cbranch_vccnz L_opoll")
a("L_ogot:")
a("s_waitcnt vmcnt(0)")
stamp(11)
count(21)
a(f"v_max3_f32 v12, v{OG0+2}, v{OG0+6}, v{OG0+10}")
a(f"v_max_f32 v12, v12, v{OG0+14}")
for r in (8, 4, 2): dpp("v_max_f32", "v12", "v12", "v12", f"row_ror:{r}")
for u in range(4): a(f"v_sub_f32 v{OG0+4*u+2}, v{OG0+4*u+2}, v12")
for u in range(4): a(f"v_exp_f32 v{OG0+4*u+2}, v{OG0+4*u+2}")
a(f"v_add_f32 v14, v{OG0+2}, v{OG0+6}")
a(f"v_mul_f32 v12, v{OG0+2}, v{OG0}")
a(f"v_mul_f32 v13, v{OG0+2}, v{OG0+1}")
a(f"v_add_f32 v9, v{OG0+10}, v{OG0+14}")
for u in range(1, 4):
    a(f"v_fmac_f32 v12, v{OG0+4*u+2}, v{OG0+4*u}")
    a(f"v_fmac_f32 v13, v{OG0+4*u+2}, v{OG0+4*u+1}")
a("v_add_f32 v14, v14, v9")
for r in (8, 4, 2):
    for x in ("v14", "v12", "v13"): dpp("v_add_f32", x, x, x, f"row_ror:{r}")
a("v_rcp_f32 v14, v14")
a("v_mul_f32 v12, v12, v14")
a("v_mul_f32 v13, v13, v14")
a("v_cvt_pk_bf16_f32 v12, v12, v12")
a("v_cvt_pk_bf16_f32 v13, v13, v13")
srcs = [("v12", "[0,0,2,2]"), ("v13", "[0,0,2,2]"), ("v12", "[1,1,3,3]"), ("v13", "[1,1,3,3]")]
for rg in range(4):
    for d in range(4):
        dpp("v_and_b32", f"v{PA0+4*rg+d}", srcs[rg][0], vM[d], f"quad_perm:{srcs[rg][1]}")
    if rg >= 1:
        c = "0" if rg == 1 else "v[52:55]"
        a(f"v_mfma_f32_16x16x32_bf16 v[52:55], {vr(PA0+4*(rg-1))}, {vr(W0+4*(rg-1))}, {c}")
a(f"v_mfma_f32_16x16x32_bf16 v[52:55], {vr(PA0+12)}, {vr(W0+12)}, v[52:55]")
a("s_mov_b32 exec_hi, 0")
a(f"ds_write_b128 {vA2}, v[52:55] offset:{L_SP}")
a("s_cmp_lg_u32 s5, 0")
a("s_waitcnt lgkmcnt(0)")
a("s_barrier")
a("s_cbranch_scc1 L_done2")
for w in range(1, 4):
    a(f"ds_read_b128 {vr(16+4*w)}, v102 offset:{L_SP + w*512}")
a("s_mov_b64 exec, -1")
a(f"ds_read_b128 {vr(16)}, v102 offset:{L_SP}")
a("s_mov_b32 exec_hi, 0")
a("s_waitcnt lgkmcnt(2)")
a("v_pk_add_f32 v[20:21], v[20:21], v[24:25]")
a("v_pk_add_f32 v[22:23], v[22:23], v[26:27]")
a("s_waitcnt lgkmcnt(0)")
a("v_pk_add_f32 v[16:17], v[16:17], v[28:29]")
a("v_pk_add_f32 v[18:19], v[18:19], v[30:31]")
a("v_pk_add_f32 v[16:17], v[16:17], v[20:21]")
a("v_pk_add_f32 v[18:19], v[18:19], v[22:23]")
a("s_mov_b64 exec, -1")
pack24(20, 16)
a(f"global_store_dwordx4 {vA3}, v[20:23], s[60:61] sc1")
a("L_done2:")
stamp(12)
diag_flush()
a("s_endpgm")
a("L_final:")
a("s_mov_b32 s46, 0x04000c0c")
a("s_mov_b32 s47, 0x0706000c")
a("s_mov_b32 s32, 0x00010001")
a("s_mov_b32 s33, 0x00010001")
a("s_waitcnt vmcnt(1)")
a(f"v_lshlrev_b32 v48, 16, {vFX}")
a(f"v_lshlrev_b32 v49, 16, {vFB}")
a("s_barrier")
stamp(12)
FS = [56 + 8*d for d in range(FD)]
def fload(d):
    a(f"global_load_dwordx4 {vr(FS[d])}, {vFG}, s[66:67] sc1")
    a(f"global_load_dwordx4 {vr(FS[d]+4)}, {vFG}, s[64:65] sc1")
for d in range(FD - 1):
    fload(d)
    if FGAP: a(f"s_nop {FGAP}")
a("L_s_poll:")
for d in range(FD):
    fload((d + FD - 1) % FD)
    a(f"s_waitcnt vmcnt({2*(FD-1)})")
    a(f"v_xor_b32 v12, s6, v{FS[d]+3}")
    a(f"v_xor_b32 v13, s6, v{FS[d]+7}")
    a("v_or_b32 v12, v12, v13")
    a("v_cmp_ne_u32 vcc, 0, v12")
    a(f"s_cbranch_vccz L_s_got{d}")
a("s_sub_u32 s100, s100, 1")
a("s_cbranch_scc0 L_s_poll")
for d in range(FD):
    a(f"L_s_got{d}:")
    GG = (FS[d], FS[d] + 4)
    for G in GG: a(f"v_perm_b32 v{G+3}, v{G}, v{G+1}, s46")
    for G in GG: a(f"v_perm_b32 v{G+3}, v{G+3}, v{G+2}, s47")
    for G in GG: a(f"v_permlane32_swap_b32 v{G}, v{G+1}")
    for G in GG: a(f"v_permlane32_swap_b32 v{G+2}, v{G+3}")
    for G, T in zip(GG, (16, 32)): a(f"v_add_f32 v{T}, v{G}, v{G+1}")
    for G, T in zip(GG, (16, 32)): a(f"v_add_f32 v{T+2}, v{G+2}, v{G+3}")
    if d < FD - 1: a("s_branch L_s_red")
a("L_s_red:")
a("s_nop 0")
stamp(13)
count(21)
for G in (16, 32): a(f"v_permlane16_swap_b32 v{G}, v{G+2}")
for G in (16, 32): a(f"v_add_f32 v{G}, v{G}, v{G+2}")
for r in (8, 4, 2, 1):
    for G in (16, 32): dpp("v_add_f32", f"v{G}", f"v{G}", f"v{G}", f"row_ror:{r}")
bf16_round_pair("v16", "v32", "v16", "v32", "v9")
a("v_add_f32 v16, v16, v49")
bf16_round("v16", "v16")
a("v_mul_f32 v50, 0xbfb8aa3b, v16")
a("v_exp_f32 v50, v50")
a("v_add_f32 v50, 1.0, v50")
a("v_rcp_f32 v50, v50")
a("v_mul_f32 v50, v50, v16")
bf16_round("v50", "v50")
a("v_mul_f32 v32, v32, v50")
bf16_round("v32", "v32")
a("v_add_f32 v32, v32, v48")
a("v_cvt_pk_bf16_f32 v32, v32, v32")
a("s_mov_b64 exec, s[32:33]")
a(f"global_store_short {vFO}, v32, s[12:13]")
a("s_cmp_lg_u32 s2, 0")
a("s_cbranch_scc1 L_noep")
a("s_mov_b64 exec, 1")
a("v_mov_b32 v33, s6")
a("v_mov_b32 v34, 0")
a("global_store_dword v34, v33, s[14:15]")
a("L_noep:")
stamp(14)
diag_flush()
a("L_end:")
a("s_endpgm")
a(".fill 1024, 4, 0xbf810000")

nv = 176 if DIAG else NVGPR
txt = header
txt += f"; @launch grid=(256,1,1) block=(512,1,1) lds={LDS_BYTES}\n"
txt += '.amdgcn_target "amdgcn-amd-amdhsa--gfx950"\n.text\n'
txt += f".globl {NAME}_kernel\n.p2align 8\n.type {NAME}_kernel,@function\n"
txt += a.text()
txt += f""".section .rodata,"a"
.p2align 6
.amdhsa_kernel {NAME}_kernel
  .amdhsa_next_free_vgpr {nv}
  .amdhsa_next_free_sgpr 102
  .amdhsa_accum_offset {nv}
  .amdhsa_group_segment_fixed_size 0
  .amdhsa_kernarg_size 104
  .amdhsa_user_sgpr_count 2
  .amdhsa_user_sgpr_kernarg_segment_ptr 1
  .amdhsa_system_sgpr_workgroup_id_x 1
.end_amdhsa_kernel
"""
open(OUT, "w").write(txt)
```

```python
import sys
sys.path.insert(0, "work")
from asmlib import Asm
NAME = "recurrent_scan__sliding_block_cached__dense_activation_gelu__decode"
DIAG = "--diag" in sys.argv
OUT = [a for a in sys.argv[1:] if not a.startswith("--")][0]
def opt(name, default):
    for x in sys.argv:
        if x.startswith("--" + name + "="): return int(x.split("=")[1])
    return default
NV1 = opt("nv1", 4)
GATEK = opt("gatek", 0)
WOLATE = opt("wolate", 0)
NOFAST = opt("nofast", 0)
TLB = opt("tlb", 0)
XNT = "nt" if opt("xnt", 0) else ""
QPRE = 0
OSLOW = opt("oslow", 0)
AMP = opt("amp", 0)
DIRTY = opt("dirty", 0)
LDSX = opt("ldsx", 0)
QMODE = opt("qmode", 0)
FD = opt("fd", 1)
FGAP = opt("fgap", 0)

WS_QA = 0x10000
WS_QB = 0x30000
WS_H = 0x50000
WS_S = 0x80000
WS_OA = 0x100000
WS_OB = 0x200000
WS_DIAG = 0x800000
L_WQ = 0x0000
L_W1 = 0x4000
L_XN = 0x6000
L_QS = 0x6400
L_MX = 0x6800
L_LS = 0x6810
L_FL = 0x6820
L_SP = 0x6900
L_OR = 0x8000
LDS_BYTES = L_OR + 8 * 3072
SPIN = 1 << 18

a = Asm()
header = open("cdna_kernels/" + NAME + ".s.ref").read().split("; Override launch")[0]
vLANE, vI16, vQ4 = "v1", "v2", "v3"
vM = ["v4", "v5", "v6", "v7"]
vN = ["v126", "v127"]
K0, V0, QB0, G0, PA0, W0 = 16, 32, 48, 64, 80, 108
X0 = 128
NVGPR = 168
vST, vST2 = "v168", "v169"
AC = 56
def vr(b, n=4): return f"v[{b}:{b+n-1}]"

def stamp(idx):
    if not DIAG: return
    a(f"s_memrealtime s[98:99]")
    a("s_waitcnt lgkmcnt(0)")
    a(f"v_writelane_b32 {vST}, s98, {idx}")
def count(idx):
    if not DIAG: return
    a(f"s_sub_u32 s101, {SPIN}, s100")
    a(f"v_writelane_b32 {vST}, s101, {idx}")
def diag_flush():
    if not DIAG: return
    a("s_mov_b64 exec, -1")
    a("s_lshl_b32 s7, s2, 3")
    a("s_add_u32 s7, s7, s5")
    a("s_lshl_b32 s7, s7, 8")
    a(f"s_add_u32 s7, s7, {WS_DIAG}")
    a("s_add_u32 s98, s14, s7")
    a("s_addc_u32 s99, s15, 0")
    a(f"v_lshlrev_b32 {vST2}, 2, {vLANE}")
    a(f"global_store_dword {vST2}, {vST}, s[98:99]")
def bf16_round_pair(dlo, dhi, slo, shi, tmp):
    a(f"v_cvt_pk_bf16_f32 {tmp}, {slo}, {shi}")
    a(f"v_lshlrev_b32 {dlo}, 16, {tmp}")
    a(f"v_and_b32 {dhi}, 0xffff0000, {tmp}")
def bf16_round(d, s):
    a(f"v_cvt_pk_bf16_f32 {d}, {s}, {s}")
    a(f"v_and_b32 {d}, 0xffff0000, {d}")
def dpp(op, d, s0, s1, ctrl):
    if op == "v_mov_b32": a(f"v_mov_b32_dpp {d}, {s0} {ctrl} row_mask:0xf bank_mask:0xf")
    else: a(f"{op}_dpp {d}, {s0}, {s1} {ctrl} row_mask:0xf bank_mask:0xf")
def row_allreduce(op, x):
    for r in (8, 4, 2, 1): dpp(op, x, x, x, f"row_ror:{r}")
def wave_allreduce(op, x, t):
    row_allreduce(op, x)
    a(f"v_mov_b32 {t}, {x}")
    a(f"v_permlane16_swap_b32 {x}, {t}")
    a(f"{op} {x}, {x}, {t}")
    a(f"v_mov_b32 {t}, {x}")
    a(f"v_permlane32_swap_b32 {x}, {t}")
    a(f"{op} {x}, {x}, {t}")
def sbase(dst, src, off):
    a(f"s_add_u32 s{dst}, s{src}, {off}")
    a(f"s_addc_u32 s{dst+1}, s{src+1}, 0")
def tagcheck(regs, t0="v12", t1="v13"):
    if len(regs) == 1:
        a(f"v_cmp_ne_u32 vcc, s6, v{regs[0]}"); return
    a(f"v_xor_b32 {t0}, s6, v{regs[0]}")
    i = 1
    while i < len(regs):
        a(f"v_xor_b32 {t1}, s6, v{regs[i]}")
        if i + 1 < len(regs):
            a(f"v_xor_b32 v{regs[i+1]}, s6, v{regs[i+1]}")
            a(f"v_or3_b32 {t0}, {t0}, {t1}, v{regs[i+1]}")
            i += 2
        else:
            a(f"v_or_b32 {t0}, {t0}, {t1}")
            i += 1
    a(f"v_cmp_ne_u32 vcc, 0, {t0}")
def pack24(dst, src):
    for n in range(3):
        a(f"v_perm_b32 v{dst+n}, v{src+n}, v{src+3}, s{88+n}")
    a(f"v_mov_b32 v{dst+3}, s6")

a(f"{NAME}_kernel:")
if DIAG: a("s_memrealtime s[100:101]")
if AMP: a("s_memrealtime s[58:59]")
a("s_cmp_ge_u32 s2, 256")
a("s_cbranch_scc1 L_end")
a("s_load_dwordx16 s[16:31], s[0:1], 0")
a("s_load_dwordx4 s[8:11], s[0:1], 64")
a("s_load_dwordx2 s[12:13], s[0:1], 80")
a("s_load_dwordx2 s[14:15], s[0:1], 96")
a(f"v_and_b32 {vLANE}, 63, v0")
a("v_lshrrev_b32 v8, 6, v0")
a(f"v_and_b32 {vI16}, 15, v0")
a(f"v_bfe_u32 {vQ4}, v0, 4, 2")
a("v_readfirstlane_b32 s5, v8")
a("s_and_b32 s3, s2, 7")
a("s_lshr_b32 s4, s2, 3")
if DIAG: a(f"v_mov_b32 {vST}, 0")
a(f"v_bfe_u32 v8, {vLANE}, 1, 3")
a(f"v_and_b32 v9, 1, {vLANE}")
a("v_lshlrev_b32 v9, 4, v9")
a(f"v_lshl_add_u32 v9, {vQ4}, 5, v9")
a("v_lshl_add_u32 v10, v8, 13, v9")
a("v_xor_b32 v11, 0x8000, v10")
a("v_add_u32 v11, 0x10000, v11")
a(f"v_lshlrev_b32 v13, 7, {vI16}")
a("v_and_b32 v13, 0x700, v13")
a(f"v_and_b32 v14, 1, {vI16}")
a("v_lshl_add_u32 v13, v14, 6, v13")
a(f"v_lshl_add_u32 v13, {vQ4}, 4, v13")
a(f"v_lshlrev_b32 v14, 4, {vLANE}")
a("s_lshl_b32 s96, s3, 5")
a("s_add_u32 s96, s96, s4")
a("s_lshr_b32 s32, s4, 2")
a("s_lshl_b32 s32, s32, 7")
a("s_lshl_b32 s33, s3, 10")
a("s_add_u32 s32, s32, s33")
a("s_and_b32 s97, s4, 3")
a("s_lshl_b32 s33, s97, 20")
a("s_add_u32 s32, s32, s33")
a("s_lshl_b32 s33, s5, 17")
a("s_add_u32 s32, s32, s33")
a("s_lshl_b32 s37, s3, 23")
a("s_lshl_b32 s38, s4, 15")
a("s_add_u32 s37, s37, s38")
a("s_lshl_b32 s38, s5, 12")
a("s_add_u32 s37, s37, s38")
a("s_add_u32 s37, s37, 0x700000")
a("s_lshl_b32 s39, s5, 11")
a("s_mov_b32 m0, s39")
a("s_add_u32 s39, s39, 1024")
a("s_lshl_b32 s41, s96, 12")
a("s_and_b32 s42, s5, 3")
a("s_lshl_b32 s42, s42, 10")
a("s_add_u32 s41, s41, s42")
a(f"s_add_u32 s41, s41, {WS_OA}")
a("v_mul_u32_u24 v124, 3584, v8")
a("v_add_u32 v124, v124, v9")
a("v_xor_b32 v125, 4, v8")
a("v_add_u32 v125, 8, v125")
a("v_mul_u32_u24 v125, 3584, v125")
a("v_add_u32 v125, v125, v9")
for i in range(4): a(f"v_mov_b32 v{V0+i}, 0")
a("s_and_b32 s36, s5, 3")
a("s_min_u32 s34, s96, 223")
a("s_lshr_b32 s35, s34, 3")
a("s_lshl_b32 s35, s35, 7")
a("s_and_b32 s34, s34, 7")
a("s_lshl_b32 s34, s34, 2")
a("s_add_u32 s34, s34, s36")
a(f"s_mul_i32 s34, s34, {16*3584}")
a("s_add_u32 s34, s34, s35")
a("s_lshl_b32 s40, s36, 11")
a(f"s_add_u32 s40, s40, {L_W1}")
a("s_cmp_lg_u32 s5, 0")
a("s_waitcnt lgkmcnt(0)")
a("s_cbranch_scc1 L_nox")
a(f"global_load_dwordx4 {vr(W0)}, v14, s[16:17] {XNT}")
a("L_nox:")
sbase(22, 22, "s32")
a("global_load_lds_dwordx4 v10, s[22:23] nt")
a("s_mov_b32 m0, s39")
sbase(18, 18, "s37")
a("global_load_lds_dwordx4 v11, s[22:23] nt")
a("s_load_dword s6, s[14:15], 0")
if TLB:
    a("s_cmp_lg_u32 s5, 6")
    a("s_cbranch_scc1 L_notlb")
    a("s_load_dword s68, s[18:19], 0")
    sbase(70, 20, "s37"); a("s_load_dword s69, s[70:71], 0")
    a("s_lshl_b32 s56, s96, 14"); sbase(72, 24, "s56"); a("s_load_dword s74, s[72:73], 0")
    a("s_load_dword s75, s[8:9], 0")
    a("s_load_dword s76, s[28:29], 0")
    a("s_load_dword s77, s[30:31], 0")
    a("s_load_dword s78, s[10:11], 0")
    a("s_load_dword s79, s[12:13], 0")
    a("L_notlb:")
a("s_getreg_b32 s86, hwreg(HW_REG_XCC_ID, 0, 4)")
if NOFAST: a("s_add_u32 s86, s86, s2")
a("s_cmp_lg_u32 s5, 7")
a("s_cbranch_scc1 L_nopf")
a("s_getpc_b64 s[54:55]")
a("s_and_b32 s56, s4, 7")
a("s_lshl_b32 s56, s56, 10")
sbase(54, 54, "s56")
a(f"global_load_dwordx4 {vr(G0)}, v14, s[54:55] {XNT}")
a("L_nopf:")
a("s_cmp_lt_u32 s5, 4")
a("s_cbranch_scc1 L_prea")
a("s_mov_b32 m0, s40")
sbase(28, 28, "s34")
sbase(42, 14, "s41")
a("s_cmp_ge_u32 s96, 224")
a("s_cbranch_scc1 L_now1")
a("global_load_lds_dwordx4 v124, s[28:29] nt")
a("s_add_u32 s40, s40, 1024")
a("s_mov_b32 m0, s40")
a("s_nop 0")
a("global_load_lds_dwordx4 v125, s[28:29] nt")
a("L_now1:")
a(f"global_store_dwordx4 v14, {vr(V0)}, s[42:43]")
a("s_branch L_nopre")
a("L_prea:")
a("s_lshl_b32 s32, s3, 14")
a("s_lshl_b32 s33, s97, 12")
a("s_add_u32 s32, s32, s33")
a("s_lshr_b32 s33, s4, 2")
a("s_lshl_b32 s33, s33, 9")
a("s_add_u32 s32, s32, s33")
a("s_lshl_b32 s33, s5, 7")
a("s_add_u32 s32, s32, s33")
a(f"s_add_u32 s32, s32, {WS_QA}")
sbase(42, 14, "s32")
if QPRE:
    a("s_mov_b64 exec, 0xff")
    a(f"global_store_dwordx4 v14, {vr(V0)}, s[42:43]")
    a("s_mov_b64 exec, -1")
a("L_nopre:")
if DIAG: a("s_memrealtime s[84:85]")
a("s_barrier")
for kh in range(2):
    for hf in range(2):
        a(f"global_load_dwordx4 {vr(K0+8*kh+4*hf)}, v13, s[18:19] offset:{kh*2048+hf*128} nt")
if DIAG: a(f"v_writelane_b32 {vST}, s100, 0")
sbase(20, 20, "s37")
a(f"v_lshlrev_b32 v15, 9, {vQ4}")
a(f"v_lshl_add_u32 v15, {vI16}, 4, v15")
a(f"v_and_b32 v8, 1, {vI16}")
a("v_cmp_eq_u32 vcc, 1, v8")
a("v_mov_b32 v9, 0xffff")
a("v_mov_b32 v10, 0xffff0000")
a("v_cndmask_b32 v9, v9, v10, vcc")
a("s_mov_b64 s[92:93], vcc")
a(f"v_bfe_u32 v8, {vI16}, 1, 2")
for d in range(4):
    a(f"v_cmp_eq_u32 vcc, {d}, v8")
    a(f"v_cndmask_b32 {vM[d]}, 0, v9, vcc")
a(f"v_or_b32 {vN[0]}, {vM[0]}, {vM[2]}")
a(f"v_or_b32 {vN[1]}, {vM[1]}, {vM[3]}")
for p in (44, 46, 60, 62, 64, 66): a(f"s_mov_b64 s[{p}:{p+1}], s[14:15]")
for r in (99, 100, 101, 102, 103): a(f"v_mov_b32 v{r}, 0")
a("s_mov_b32 s88, 0x07060503")
a("s_mov_b32 s89, 0x07060502")
a("s_mov_b32 s90, 0x07060501")
a("s_cmp_lg_u32 s5, 0")
a("s_cbranch_scc1 L_noln")
a(f"s_waitcnt vmcnt({6 + QPRE})")
if DIAG:
    a("s_memrealtime s[94:95]")
X = [f"v{V0+i}" for i in range(8)]
for d in range(4):
    a(f"v_lshlrev_b32 {X[2*d]}, 16, v{W0+d}")
    a(f"v_and_b32 {X[2*d+1]}, 0xffff0000, v{W0+d}")
a(f"v_add_f32 v8, {X[0]}, {X[1]}")
a(f"v_add_f32 v9, {X[2]}, {X[3]}")
a(f"v_add_f32 v10, {X[4]}, {X[5]}")
a(f"v_add_f32 v11, {X[6]}, {X[7]}")
a("v_add_f32 v8, v8, v9")
a("v_add_f32 v10, v10, v11")
a("v_add_f32 v8, v8, v10")
wave_allreduce("v_add_f32", "v8", "v9")
a("v_mul_f32 v8, 0x3b000000, v8")
D = [f"v{V0+8+i}" for i in range(8)]
for i in range(8): a(f"v_sub_f32 {D[i]}, {X[i]}, v8")
a(f"v_mul_f32 v10, {D[0]}, {D[0]}")
for i in range(1, 8): a(f"v_fmac_f32 v10, {D[i]}, {D[i]}")
wave_allreduce("v_add_f32", "v10", "v9")
a("v_mul_f32 v10, 0x3b000000, v10")
bf16_round("v10", "v10")
a("v_add_f32 v10, 0x3727c5ac, v10")
bf16_round("v10", "v10")
a("v_sqrt_f32 v10, v10")
bf16_round("v10", "v10")
a("v_rcp_f32 v10, v10")
bf16_round("v8", "v8")
for i in range(8): a(f"v_sub_f32 {D[i]}, {X[i]}, v8")
for d in range(4): bf16_round_pair(D[2*d], D[2*d+1], D[2*d], D[2*d+1], "v9")
for i in range(8): a(f"v_mul_f32 {D[i]}, {D[i]}, v10")
for d in range(4): a(f"v_cvt_pk_bf16_f32 v{W0+d}, {D[2*d]}, {D[2*d+1]}")
a(f"ds_write_b128 v14, {vr(W0)} offset:{L_XN}")
a("v_mov_b32 v8, 0")
for i in range(4): a(f"v_mov_b32 v{W0+4+i}, 0xff800000")
for i in range(4): a(f"v_mov_b32 v{W0+8+i}, 0")
a("s_mov_b64 exec, 1")
a(f"ds_write_b128 v8, {vr(W0+4)} offset:{L_MX}")
a(f"ds_write_b128 v8, {vr(W0+8)} offset:{L_LS}")
a(f"ds_write_b32 v8, v{W0+8} offset:{L_FL}")
a("s_mov_b64 exec, -1")
a("L_noln:")
a("s_and_b32 s32, s5, 3")
a("s_lshl_b32 s32, s32, 8")
a(f"v_lshlrev_b32 v8, 10, {vQ4}")
a(f"v_lshl_add_u32 v8, {vI16}, 3, v8")
a("v_add_u32 v8, s32, v8")
a(f"v_and_b32 v9, 1, {vQ4}")
a("v_lshlrev_b32 v9, 7, v9")
a("v_add_u32 v10, v8, v9")
a("v_xor_b32 v9, 128, v9")
a("v_add_u32 v11, v8, v9")
a(f"v_lshlrev_b32 v12, 4, {vQ4}")
a(f"v_lshlrev_b32 v13, 3, {vLANE}")
a("s_waitcnt lgkmcnt(0)")
if DIAG:
    a(f"v_writelane_b32 {vST}, s94, 15")
    a(f"v_writelane_b32 {vST}, s84, 23")
stamp(16)
a("s_lshr_b32 s6, s6, 1")
a("s_mul_i32 s6, s6, 0x5DEECE6D")
a("s_add_u32 s6, s6, 0xB")
a("s_lshl_b32 s6, s6, 1")
a("s_or_b32 s6, s6, 1")
def vload(n):
    kh, aa = n >> 1, n & 1
    a(f"global_load_dwordx4 {vr(V0+4*n)}, v15, s[20:21] offset:{kh*2048+aa*256} nt")
def partial(nsteps, lbase, XA):
    for t in range(nsteps):
        a(f"ds_read_b128 {vr(XA+4*t)}, v12 offset:{L_XN + t*64}")
        b = PA0 + 4*t
        a(f"ds_read_b64_tr_b16 v[{b}:{b+1}], v10 offset:{lbase + t*4096}")
        a(f"ds_read_b64_tr_b16 v[{b+2}:{b+3}], v11 offset:{lbase + t*4096}")
    if nsteps == 4: a(f"v_mov_b32 v{QB0+2}, s86")
    else: a(f"v_mov_b32 v{QB0+1}, s6")
    a(f"v_mov_b32 v{QB0+3}, s6")
    for t in range(nsteps):
        a(f"s_waitcnt lgkmcnt({3*(nsteps-1-t)})")
        c = "0" if t == 0 else vr(AC)
        a(f"v_mfma_f32_16x16x32_bf16 {vr(AC)}, {vr(XA+4*t)}, {vr(PA0+4*t)}, {c}")
def partial_fin(k):
    a(f"v_mov_b32 v{QB0}, v{AC}")
    dpp("v_mov_b32", f"v{QB0+k}", f"v{AC}", None, "quad_perm:[1,0,3,2]")
    a("s_mov_b64 exec, 0x5555")
def woload():
    for rg in range(4):
        a(f"global_load_dwordx4 {vr(W0+4*rg)}, v124, s[24:25] offset:{rg*1024} nt")
HG = X0 + 28
B1R = X0 + 36
def hgather():
    a(f"global_load_dwordx4 {vr(HG)}, v{W0}, s[44:45] sc1")
    a(f"global_load_dwordx4 {vr(HG+4)}, v{W0}, s[44:45] offset:16 sc1")
def w2load():
    for rg in range(7):
        if rg < 4: a(f"global_load_dwordx4 {vr(X0+4*rg)}, v{W0+1}, s[8:9] offset:{rg*1024} nt")
        else: a(f"global_load_dwordx4 {vr(X0+4*rg)}, v{W0+2}, s[8:9] offset:{(rg-4)*1024} nt")
    for n in range(3):
        a(f"global_load_ushort v{B1R+n}, v{W0+3}, s[30:31] offset:{2*n} {XNT}")
    a(f"global_load_ushort v{B1R+3}, v{W0+4}, s[30:31] offset:6 {XNT}")
vQA, vHD, vOW, vA1, vA2, vA3 = "v96", "v97", "v98", "v99", "v100", "v101"
a(f"v_lshrrev_b32 v8, 2, {vI16}")
a(f"v_lshlrev_b32 {vHD}, 2, v8")
a("v_lshlrev_b32 v8, 8, v8")
a(f"v_lshl_add_u32 v8, {vQ4}, 4, v8")
a(f"v_and_b32 v9, 1, {vI16}")
a(f"v_lshl_add_u32 {vQA}, v9, 6, v8")
a("s_mul_i32 s36, s5, 3072")
a(f"v_mul_u32_u24 {vOW}, 768, {vQ4}")
a(f"v_lshl_add_u32 {vOW}, {vI16}, 4, {vOW}")
a(f"v_add_u32 {vOW}, s36, {vOW}")
a("s_mov_b32 s80, 0x3db504f3")
a("s_mov_b32 s81, 0x3fb8aa3b")
a("s_mov_b32 s82, 0x11111111")
a("s_mov_b32 s83, 0x11111111")
a("s_cmp_ge_u32 s5, 4")
a("s_cbranch_scc1 L_B0b")
a(f"v_lshrrev_b32 v8, 1, {vI16}")
a("v_lshlrev_b32 v8, 7, v8")
a(f"v_lshl_add_u32 v8, {vQ4}, 5, v8")
a(f"v_lshl_add_u32 {vA1}, v9, 4, v8")
a(f"v_lshlrev_b32 v8, 5, {vI16}")
a(f"v_lshl_add_u32 v8, {vQ4}, 4, v8")
a("s_lshl_b32 s32, s5, 9")
a(f"v_add_u32 {vA2}, s32, v8")
a("s_lshl_b32 s32, s97, 15")
a("s_lshr_b32 s33, s96, 2")
a("s_lshl_b32 s33, s33, 7")
a("s_add_u32 s32, s32, s33")
a(f"s_add_u32 s32, s32, {WS_S}")
sbase(60, 14, "s32")
a(f"v_lshrrev_b32 v8, 5, {vLANE}")
a(f"v_lshlrev_b32 {vA3}, 17, v8")
a("v_mul_u32_u24 v8, 1536, v8")
a(f"v_lshl_add_u32 v102, {vLANE}, 4, v8")
a(f"v_bfe_u32 v8, {vLANE}, 3, 2")
a(f"v_lshl_add_u32 {vA3}, v8, 13, {vA3}")
a(f"v_and_b32 v8, 7, {vLANE}")
a(f"v_lshl_add_u32 {vA3}, v8, 4, {vA3}")
a("s_lshl_b32 s32, s97, 8")
a("v_add_u32 v12, s32, v12")
a("s_lshl_b32 s32, s3, 14")
a("s_lshl_b32 s33, s5, 10")
a("s_add_u32 s32, s32, s33")
a(f"s_add_u32 s32, s32, {WS_QA + 4096}")
sbase(44, 14, "s32")
sbase(46, 44, 8192)
a("s_and_b32 s32, s4, 28")
a("s_add_u32 s32, s32, s5")
a("s_lshl_b32 s33, s3, 5")
a("s_add_u32 s91, s32, s33")
a("s_lshl_b32 s32, s91, 14")
a("s_lshl_b32 s33, s97, 8")
a("s_add_u32 s32, s32, s33")
sbase(24, 24, "s32")
a("s_lshl_b32 s32, s91, 12")
a(f"s_add_u32 s32, s32, {WS_OA}")
sbase(62, 14, "s32")
a(f"v_lshlrev_b32 v124, 12, {vQ4}")
a(f"v_lshl_add_u32 v124, {vI16}, 4, v124")
a("s_waitcnt vmcnt(4)")
stamp(2)
a("s_barrier")
partial(4, L_WQ, G0)
a(f"v_lshlrev_b32 v10, 4, {vLANE}")
partial_fin(1)
a(f"global_store_dwordx4 v13, {vr(QB0)}, s[42:43] sc1")
a("s_mov_b64 exec, -1")
stamp(4)
a("s_barrier")
NST = 1
for n in range(NV1): vload(n)
if GATEK: a(f"s_waitcnt vmcnt({NV1 + NST})")
stamp(1)
a("s_barrier")
def qgather(fl="sc1"):
    a(f"global_load_dwordx4 {vr(G0)}, v10, s[44:45] offset:-4096 {fl}")
    a(f"global_load_dwordx4 {vr(G0+4)}, v10, s[44:45] {fl}")
    a(f"global_load_dwordx4 {vr(G0+8)}, v10, s[46:47] offset:-4096 {fl}")
    a(f"global_load_dwordx4 {vr(G0+12)}, v10, s[46:47] {fl}")
qgather({0: "sc1", 1: "sc1", 2: "", 3: "nt", 4: "sc0"}[QMODE])
stamp(22)
a("s_barrier")
for n in range(NV1, 4): vload(n)
if NV1 < 4: a("s_barrier")
if WOLATE == 0: woload()
stamp(5)
a(f"s_mov_b32 s100, {SPIN}")
a("s_lshl_b32 s32, s5, 8")
a(f"v_lshl_add_u32 v9, {vLANE}, 2, s32")
if DIAG and NV1 == 4 and WOLATE == 0:
    a("s_waitcnt vmcnt(13)")
    stamp(17)
    a("s_waitcnt vmcnt(8)")
    stamp(18)
a(f"s_waitcnt vmcnt({4 - NV1 + (4 if WOLATE == 0 else 0)})")
stamp(19)
a("s_branch L_qchk")
a("L_qpoll:")
qgather()
a("s_waitcnt vmcnt(0)")
a("L_qchk:")
tagcheck([G0 + 3 + 4*n for n in range(4)])
a("s_sub_u32 s100, s100, 1")
a("s_cbranch_scc1 L_qgot")
a("s_cbranch_vccnz L_qpoll")
a("L_qgot:")
a(f"v_pk_add_f32 v[{G0}:{G0+1}], v[{G0}:{G0+1}], v[{G0+4}:{G0+5}]")
a(f"v_pk_add_f32 v[{G0+8}:{G0+9}], v[{G0+8}:{G0+9}], v[{G0+12}:{G0+13}]")
a(f"v_xor_b32 v12, s86, v{G0+2}")
a(f"v_pk_add_f32 v[{G0}:{G0+1}], v[{G0}:{G0+1}], v[{G0+8}:{G0+9}]")
a(f"v_xor_b32 v13, s86, v{G0+6}")
a(f"v_xor_b32 v{G0+10}, s86, v{G0+10}")
a(f"v_cvt_pk_bf16_f32 v8, v{G0}, v{G0+1}")
a(f"v_xor_b32 v{G0+14}, s86, v{G0+14}")
a(f"ds_write_b32 v9, v8 offset:{L_QS}")
a(f"v_or3_b32 v12, v12, v13, v{G0+10}")
a(f"v_or_b32 v12, v12, v{G0+14}")
a("v_cmp_ne_u32 vcc, 0, v12")
a("s_cbranch_vccz L_same")
a("v_mov_b32 v12, 0")
a("v_mov_b32 v13, 1")
a(f"ds_write_b32 v12, v13 offset:{L_FL}")
a("L_same:")
if WOLATE == 1: woload()
count(20)
a(f"s_mov_b32 s87, {4 if WOLATE < 2 else 0}")
a("s_branch L_B1")
a("L_B0b:")
a("s_and_b32 s33, s96, 7")
a("s_lshl_b32 s32, s33, 7")
a("v_add_u32 v12, s32, v12")
a("s_mul_i32 s32, s33, 16512")
a("s_lshr_b32 s33, s96, 3")
a("s_lshl_b32 s33, s33, 9")
a("s_add_u32 s32, s32, s33")
a("s_and_b32 s36, s5, 3")
a("s_lshl_b32 s33, s36, 7")
a("s_add_u32 s32, s32, s33")
a(f"s_add_u32 s32, s32, {WS_H}")
sbase(42, 14, "s32")
a("s_lshr_b32 s7, s96, 2")
a("s_mul_i32 s7, s7, 28")
a("s_lshl_b32 s32, s7, 3")
a(f"s_add_u32 s32, s32, {WS_H}")
sbase(44, 14, "s32")
a("s_lshl_b32 s32, s7, 10")
a("s_lshl_b32 s33, s97, 8")
a("s_add_u32 s32, s32, s33")
sbase(8, 8, "s32")
a("s_lshl_b32 s32, s7, 1")
sbase(30, 30, "s32")
a(f"v_and_b32 v{W0}, 7, {vI16}")
a(f"v_mul_u32_u24 v{W0}, 16512, v{W0}")
a(f"v_mul_u32_u24 v{W0+1}, 7, {vQ4}")
a(f"v_lshrrev_b32 v{W0+3}, 3, {vI16}")
a(f"v_lshl_add_u32 v{W0+3}, v{W0+3}, 2, v{W0+1}")
a(f"v_lshl_add_u32 v{W0}, v{W0+3}, 3, v{W0}")
a(f"v_lshlrev_b32 v{W0+3}, 1, v{W0+3}")
a(f"v_min_u32 v{W0+4}, 48, v{W0+3}")
a(f"v_lshlrev_b32 v{W0+1}, 10, v{W0+1}")
a(f"v_lshl_add_u32 v{W0+1}, {vI16}, 4, v{W0+1}")
a(f"v_add_u32 v{W0+2}, 4096, v{W0+1}")
a("s_mul_i32 s37, s36, 768")
a(f"v_bfe_u32 v9, {vLANE}, 1, 1")
a("v_mul_u32_u24 v9, 384, v9")
a(f"v_lshrrev_b32 v8, 2, {vLANE}")
a("v_lshl_add_u32 v9, v8, 4, v9")
a(f"v_and_b32 v8, 1, {vLANE}")
a("v_lshl_add_u32 v9, v8, 3, v9")
a(f"v_add_u32 {vA1}, s37, v9")
a(f"v_lshrrev_b32 v9, 3, {vLANE}")
a("v_lshlrev_b32 v9, 12, v9")
a(f"v_and_b32 v8, 7, {vLANE}")
a(f"v_lshl_add_u32 {vA2}, v8, 4, v9")
a("s_lshl_b32 s38, s36, 2")
a(f"v_mov_b32 {vA3}, s38")
a("s_lshl_b32 s32, s3, 17")
a("s_lshl_b32 s37, s36, 15")
a("s_add_u32 s32, s32, s37")
a("s_lshl_b32 s37, s4, 7")
a("s_add_u32 s32, s32, s37")
a(f"s_add_u32 s32, s32, {WS_OA}")
sbase(60, 14, "s32")
sbase(62, 60, WS_OB - WS_OA)
a("s_and_b32 s32, s4, 15")
a("s_lshl_b32 s33, s3, 4")
a("s_add_u32 s32, s32, s33")
a("s_lshr_b32 s33, s32, 3")
a("s_lshl_b32 s33, s33, 13")
a("s_and_b32 s34, s32, 7")
a("s_lshl_b32 s34, s34, 4")
a("s_add_u32 s33, s33, s34")
a(f"s_add_u32 s33, s33, {WS_S}")
sbase(64, 14, "s33")
sbase(66, 64, 131072)
a("s_lshl_b32 s33, s32, 3")
sbase(16, 16, "s33")
sbase(10, 10, "s33")
sbase(12, 12, "s33")
vFO, vFG, vFX, vFB = "v102", "v103", "v104", "v105"
a(f"v_and_b32 v8, 1, {vQ4}")
a("v_lshlrev_b32 v8, 2, v8")
a(f"v_and_b32 v9, 2, {vQ4}")
a(f"v_add_u32 {vFO}, v8, v9")
a(f"v_lshlrev_b32 {vFG}, 7, {vLANE}")
a("s_waitcnt vmcnt(4)")
stamp(2)
a("s_barrier")
partial(2, L_W1, G0)
partial_fin(2)
a(f"global_store_dwordx4 v13, {vr(QB0)}, s[42:43] sc1")
a("s_mov_b64 exec, -1")
stamp(4)
a("s_barrier")
for n in range(NV1): vload(n)
if GATEK: a(f"s_waitcnt vmcnt({NV1 + 1})")
stamp(1)
a("s_barrier")
a("s_barrier")
for n in range(NV1, 4): vload(n)
if NV1 < 4: a("s_barrier")
a("s_mov_b32 s87, 0")
a("s_cmp_lg_u32 s5, 4")
a("s_cbranch_scc1 L_now2")
hgather()
w2load()
a("s_mov_b32 s87, 13")
a("L_now2:")
a("s_cmp_lg_u32 s5, 5")
a("s_cbranch_scc1 L_nof")
a(f"global_load_ushort {vFX}, {vFO}, s[16:17] {XNT}")
a(f"global_load_ushort {vFB}, {vFO}, s[10:11] {XNT}")
a(f"global_load_dwordx4 {vr(X0)}, {vFG}, s[66:67] sc1")
a(f"global_load_dwordx4 {vr(X0+4)}, {vFG}, s[64:65] sc1")
a("s_mov_b32 s87, 4")
a("L_nof:")
stamp(5)
a("s_cmp_eq_u32 s87, 13")
a("s_cbranch_scc1 L_kw13")
a("s_cmp_eq_u32 s87, 4")
a("s_cbranch_scc1 L_kw4")
a("s_waitcnt vmcnt(5)")
a("L_kw4:")
a("s_waitcnt vmcnt(9)")
a("L_kw13:")
a("s_waitcnt vmcnt(18)")
a("L_B1:")
a("s_waitcnt lgkmcnt(0)")
stamp(6)
a("s_barrier")
for hf in range(2):
    a(f"ds_read_b128 {vr(QB0+4*hf)}, {vQA} offset:{L_QS + hf*128}")
a("v_mov_b32 v8, 0")
a(f"ds_read_b32 v11, v8 offset:{L_FL}")
DD = lambda kh: G0 + 4*kh
for hf in range(2):
    a(f"s_waitcnt lgkmcnt({2-hf})")
    for kh in range(2):
        c = "0" if hf == 0 else vr(DD(kh))
        a(f"v_mfma_f32_16x16x32_bf16 {vr(DD(kh))}, {vr(K0+8*kh+4*hf)}, {vr(QB0+4*hf)}, {c}")
a("s_waitcnt lgkmcnt(0)")
a("v_readfirstlane_b32 s85, v11")
if OSLOW: a("s_mov_b32 s85, 1")
S = [f"v{G0+8+n}" for n in range(4)]
for kh in range(2):
    for aa in range(2):
        d = DD(kh) + 2*aa
        a(f"v_cndmask_b32 {S[kh*2+aa]}, v{d}, v{d+1}, s[92:93]")
for n in range(4): dpp("v_add_f32", S[n], S[n], S[n], "quad_perm:[1,0,3,2]")
a(f"v_cvt_pk_bf16_f32 v9, {S[0]}, {S[1]}")
a(f"v_cvt_pk_bf16_f32 v10, {S[2]}, {S[3]}")
a(f"v_lshlrev_b32 {S[0]}, 16, v9")
a(f"v_and_b32 {S[1]}, 0xffff0000, v9")
a(f"v_lshlrev_b32 {S[2]}, 16, v10")
a(f"v_and_b32 {S[3]}, 0xffff0000, v10")
for n in range(4): a(f"v_mul_f32 {S[n]}, s80, {S[n]}")
a(f"v_cvt_pk_bf16_f32 v9, {S[0]}, {S[1]}")
a(f"v_cvt_pk_bf16_f32 v10, {S[2]}, {S[3]}")
a(f"v_lshlrev_b32 {S[0]}, 16, v9")
a(f"v_and_b32 {S[1]}, 0xffff0000, v9")
a(f"v_lshlrev_b32 {S[2]}, 16, v10")
a(f"v_and_b32 {S[3]}, 0xffff0000, v10")
a(f"v_max3_f32 v10, {S[0]}, {S[1]}, {S[2]}")
a(f"v_max_f32 v10, v10, {S[3]}")
a("s_mov_b64 exec, s[82:83]")
a(f"ds_max_f32 {vHD}, v10 offset:{L_MX}")
a("s_mov_b64 exec, -1")
waits = [0, 4, 13]
for wv in waits[1:]:
    a(f"s_cmp_eq_u32 s87, {wv}")
    a(f"s_cbranch_scc1 L_vw{wv}")
for wv in waits:
    if wv: a(f"L_vw{wv}:")
    a(f"s_waitcnt vmcnt({wv})")
a("s_waitcnt lgkmcnt(0)")
stamp(7)
a("s_barrier")
a(f"ds_read_b32 v10, {vHD} offset:{L_MX}")
a("s_waitcnt lgkmcnt(0)")
a("v_mul_f32 v10, s81, v10")
for n in range(4): a(f"v_fma_f32 {S[n]}, {S[n]}, s81, -v10")
for n in range(4): a(f"v_exp_f32 {S[n]}, {S[n]}")
ACC = [QB0, QB0 + 4]
for n in range(4):
    a(f"v_cvt_pk_bf16_f32 v{G0+12+n}, {S[n]}, {S[n]}")
for n in range(4):
    for d in range(2): a(f"v_and_b32 v{PA0+2*n+d}, v{G0+12+n}, {vN[d]}")
    if n >= 1:
        m = n - 1
        for hl in range(2):
            c = "0" if m == 0 else vr(ACC[hl])
            a(f"v_mfma_f32_16x16x16_bf16 {vr(ACC[hl])}, {vr(PA0+2*m, 2)}, {vr(V0+4*m+2*hl, 2)}, {c}")
a(f"v_add_f32 v12, {S[0]}, {S[1]}")
a(f"v_add_f32 v13, {S[2]}, {S[3]}")
for hl in range(2):
    a(f"v_mfma_f32_16x16x16_bf16 {vr(ACC[hl])}, {vr(PA0+6, 2)}, {vr(V0+12+2*hl, 2)}, {vr(ACC[hl])}")
a("v_add_f32 v10, v12, v13")
a("s_mov_b64 exec, s[82:83]")
a(f"ds_add_f32 {vHD}, v10 offset:{L_LS}")
a("s_mov_b64 exec, -1")
a("v_mov_b32 v35, s6")
a("s_cmp_lt_u32 s5, 4")
for hl in range(2):
    a(f"ds_write_b128 {vOW}, {vr(ACC[hl])} offset:{L_OR + hl*384}")
a(f"s_mov_b32 s100, {SPIN}")
a("s_waitcnt lgkmcnt(0)")
stamp(9)
if DIAG: a("s_cmp_lt_u32 s5, 4")
a("s_barrier")
a("s_cbranch_scc1 L_wo")
a(f"ds_read_b32 v11, {vA3} offset:{L_LS}")
a(f"ds_read_b32 v12, {vA3} offset:{L_MX}")
for w in range(8):
    a(f"ds_read_b64 v[{16+2*w}:{17+2*w}], {vA1} offset:{L_OR + w*3072}")
a("s_waitcnt lgkmcnt(8)")
a("v_log_f32 v13, v11")
a("v_rcp_f32 v11, v11")
a("v_fma_f32 v34, v12, s81, v13")
a("s_waitcnt lgkmcnt(4)")
a("v_pk_add_f32 v[16:17], v[16:17], v[18:19]")
a("v_pk_add_f32 v[20:21], v[20:21], v[22:23]")
a("s_waitcnt lgkmcnt(0)")
a("v_pk_add_f32 v[24:25], v[24:25], v[26:27]")
a("v_pk_add_f32 v[28:29], v[28:29], v[30:31]")
a("v_pk_add_f32 v[16:17], v[16:17], v[20:21]")
a("v_pk_add_f32 v[24:25], v[24:25], v[28:29]")
a("s_cmp_lg_u32 s85, 0")
a("v_pk_add_f32 v[16:17], v[16:17], v[24:25]")
a("v_mul_f32 v32, v16, v11")
a("v_mul_f32 v33, v17, v11")
a("s_cbranch_scc1 L_oslow")
a(f"global_store_dwordx4 {vA2}, v[32:35], s[60:61]")
a("s_branch L_opubd")
a("L_oslow:")
a(f"global_store_dwordx4 {vA2}, v[32:35], s[62:63] sc1")
a("L_opubd:")
stamp(10)
a("s_cmp_eq_u32 s5, 4")
a("s_cbranch_scc1 L_ffn2")
a("s_cmp_lg_u32 s5, 5")
a("s_cbranch_scc1 L_done")
a("s_cmp_lt_u32 s4, 16")
a("s_cbranch_scc1 L_final")
a("L_done:")
if DIRTY:
    a("s_lshl_b32 s32, s2, 3")
    a("s_add_u32 s32, s32, s5")
    a("s_lshl_b32 s32, s32, 14")
    a("s_add_u32 s32, s32, 0x1000000")
    sbase(60, 14, "s32")
    a(f"v_lshlrev_b32 v8, 4, {vLANE}")
    for n in range(DIRTY):
        a(f"global_store_dwordx4 v8, v[32:35], s[60:61]")
        a("v_add_u32 v8, 1024, v8")
diag_flush()
a("s_endpgm")
a("L_ffn2:")
a(f"v_cmp_gt_u32 s[40:41], 8, {vI16}")
a("s_waitcnt vmcnt(1)")
a("s_branch L_hchk")
a("L_hpoll:")
hgather()
a("s_waitcnt vmcnt(0)")
a("L_hchk:")
a("v_mov_b32 v14, s6")
a(f"v_cndmask_b32 v14, v14, v{HG+7}, s[40:41]")
tagcheck([HG+1, HG+3, HG+5, 14])
a("s_sub_u32 s100, s100, 1")
a("s_cbranch_scc1 L_hgot")
a("s_cbranch_vccnz L_hpoll")
a("L_hgot:")
H = [f"v{HG+2*n}" for n in range(4)]
for ctrl in ("quad_perm:[1,0,3,2]", "quad_perm:[2,3,0,1]", "row_half_mirror"):
    for n in range(4): dpp("v_add_f32", H[n], H[n], H[n], ctrl)
a("v_mov_b32 v30, 0x3d372713")
T4 = [f"v{16+n}" for n in range(4)]
for n in range(4): a(f"v_lshlrev_b32 v{B1R+n}, 16, v{B1R+n}")
for n in (0, 2): bf16_round_pair(H[n], H[n+1], H[n], H[n+1], "v9")
for n in range(4): a(f"v_add_f32 {H[n]}, {H[n]}, v{B1R+n}")
for n in (0, 2): bf16_round_pair(H[n], H[n+1], H[n], H[n+1], "v9")
for n in range(4): a(f"v_mul_f32 {T4[n]}, {H[n]}, {H[n]}")
for n in range(4): a(f"v_fma_f32 {T4[n]}, {T4[n]}, v30, 1.0")
for n in range(4): a(f"v_mul_f32 {T4[n]}, {T4[n]}, {H[n]}")
for n in range(4): a(f"v_mul_f32 {T4[n]}, 0xc0135761, {T4[n]}")
for n in range(4): a(f"v_exp_f32 {T4[n]}, {T4[n]}")
for n in range(4): a(f"v_add_f32 {T4[n]}, 1.0, {T4[n]}")
for n in range(4): a(f"v_rcp_f32 {T4[n]}, {T4[n]}")
for n in range(4): a(f"v_mul_f32 {H[n]}, {H[n]}, {T4[n]}")
for n in range(4): a(f"v_cvt_pk_bf16_f32 v{20+n}, {H[n]}, {H[n]}")
for n in range(3): dpp("v_mov_b32", f"v{24+n}", f"v{20+n}", None, "row_ror:8")
for rg in range(7):
    for d in range(4): a(f"v_and_b32 v{G0+4*rg+d}, v{20+rg}, {vM[d]}")
for rg in range(7):
    c = "0" if rg == 0 else vr(AC)
    a(f"v_mfma_f32_16x16x32_bf16 {vr(AC)}, {vr(G0+4*rg)}, {vr(X0+4*rg)}, {c}")
a(f"v_lshlrev_b32 v10, 5, {vI16}")
a(f"v_lshl_add_u32 v10, {vQ4}, 4, v10")
a("s_mov_b32 exec_hi, 0")
a(f"ds_write_b128 v10, {vr(AC)} offset:{L_SP + 2048}")
a("s_waitcnt lgkmcnt(0)")
stamp(11)
diag_flush()
a("s_endpgm")
a("L_wo:")
if WOLATE == 2: woload()
a("s_cmp_eq_u32 s85, 0")
a("s_cbranch_scc1 L_opoll")
sbase(62, 62, WS_OB - WS_OA)
OG0 = 16
a("L_opoll:")
for u in range(4):
    a(f"global_load_dwordx4 {vr(OG0+4*u)}, {vA1}, s[62:63] offset:{u*1024} sc1")
a("s_sub_u32 s100, s100, 1")
a("s_cbranch_scc1 L_ogot")
a("s_waitcnt vmcnt(0)")
tagcheck([OG0 + 3 + 4*n for n in range(4)])
a("s_cbranch_vccnz L_opoll")
a("L_ogot:")
a("s_waitcnt vmcnt(0)")
stamp(11)
count(21)
a(f"v_max3_f32 v12, v{OG0+2}, v{OG0+6}, v{OG0+10}")
a(f"v_max_f32 v12, v12, v{OG0+14}")
for r in (8, 4, 2): dpp("v_max_f32", "v12", "v12", "v12", f"row_ror:{r}")
for u in range(4): a(f"v_sub_f32 v{OG0+4*u+2}, v{OG0+4*u+2}, v12")
for u in range(4): a(f"v_exp_f32 v{OG0+4*u+2}, v{OG0+4*u+2}")
a(f"v_add_f32 v14, v{OG0+2}, v{OG0+6}")
a(f"v_mul_f32 v12, v{OG0+2}, v{OG0}")
a(f"v_mul_f32 v13, v{OG0+2}, v{OG0+1}")
a(f"v_add_f32 v9, v{OG0+10}, v{OG0+14}")
for u in range(1, 4):
    a(f"v_fmac_f32 v12, v{OG0+4*u+2}, v{OG0+4*u}")
    a(f"v_fmac_f32 v13, v{OG0+4*u+2}, v{OG0+4*u+1}")
a("v_add_f32 v14, v14, v9")
for r in (8, 4, 2):
    for x in ("v14", "v12", "v13"): dpp("v_add_f32", x, x, x, f"row_ror:{r}")
a("v_rcp_f32 v14, v14")
a("v_mul_f32 v12, v12, v14")
a("v_mul_f32 v13, v13, v14")
a("v_cvt_pk_bf16_f32 v12, v12, v12")
a("v_cvt_pk_bf16_f32 v13, v13, v13")
srcs = [("v12", "[0,0,2,2]"), ("v13", "[0,0,2,2]"), ("v12", "[1,1,3,3]"), ("v13", "[1,1,3,3]")]
for rg in range(4):
    for d in range(4):
        dpp("v_and_b32", f"v{PA0+4*rg+d}", srcs[rg][0], vM[d], f"quad_perm:{srcs[rg][1]}")
    if rg >= 1:
        c = "0" if rg == 1 else "v[52:55]"
        a(f"v_mfma_f32_16x16x32_bf16 v[52:55], {vr(PA0+4*(rg-1))}, {vr(W0+4*(rg-1))}, {c}")
a(f"v_mfma_f32_16x16x32_bf16 v[52:55], {vr(PA0+12)}, {vr(W0+12)}, v[52:55]")
a("s_mov_b32 exec_hi, 0")
a(f"ds_write_b128 {vA2}, v[52:55] offset:{L_SP}")
a("s_cmp_lg_u32 s5, 0")
a("s_waitcnt lgkmcnt(0)")
a("s_barrier")
a("s_cbranch_scc1 L_done2")
for w in range(1, 4):
    a(f"ds_read_b128 {vr(16+4*w)}, v102 offset:{L_SP + w*512}")
a("s_mov_b64 exec, -1")
a(f"ds_read_b128 {vr(16)}, v102 offset:{L_SP}")
a("s_mov_b32 exec_hi, 0")
a("s_waitcnt lgkmcnt(2)")
a("v_pk_add_f32 v[20:21], v[20:21], v[24:25]")
a("v_pk_add_f32 v[22:23], v[22:23], v[26:27]")
a("s_waitcnt lgkmcnt(0)")
a("v_pk_add_f32 v[16:17], v[16:17], v[28:29]")
a("v_pk_add_f32 v[18:19], v[18:19], v[30:31]")
a("v_pk_add_f32 v[16:17], v[16:17], v[20:21]")
a("v_pk_add_f32 v[18:19], v[18:19], v[22:23]")
a("s_mov_b64 exec, -1")
pack24(20, 16)
a(f"global_store_dwordx4 {vA3}, v[20:23], s[60:61] sc1")
a("L_done2:")
stamp(12)
diag_flush()
a("s_endpgm")
a("L_final:")
a("s_mov_b32 s46, 0x04000c0c")
a("s_mov_b32 s47, 0x0706000c")
a("s_mov_b32 s32, 0x00010001")
a("s_mov_b32 s33, 0x00010001")
a("s_waitcnt vmcnt(1)")
a(f"v_lshlrev_b32 v48, 16, {vFX}")
a(f"v_lshlrev_b32 v49, 16, {vFB}")
a("s_barrier")
stamp(12)
FS = [56 + 8*d for d in range(FD)]
def fload(d):
    a(f"global_load_dwordx4 {vr(FS[d])}, {vFG}, s[66:67] sc1")
    a(f"global_load_dwordx4 {vr(FS[d]+4)}, {vFG}, s[64:65] sc1")
for d in range(FD - 1):
    fload(d)
    if FGAP: a(f"s_nop {FGAP}")
a("L_s_poll:")
for d in range(FD):
    fload((d + FD - 1) % FD)
    a(f"s_waitcnt vmcnt({2*(FD-1)})")
    a(f"v_xor_b32 v12, s6, v{FS[d]+3}")
    a(f"v_xor_b32 v13, s6, v{FS[d]+7}")
    a("v_or_b32 v12, v12, v13")
    a("v_cmp_ne_u32 vcc, 0, v12")
    a(f"s_cbranch_vccz L_s_got{d}")
a("s_sub_u32 s100, s100, 1")
a("s_cbranch_scc0 L_s_poll")
for d in range(FD):
    a(f"L_s_got{d}:")
    GG = (FS[d], FS[d] + 4)
    for G in GG: a(f"v_perm_b32 v{G+3}, v{G}, v{G+1}, s46")
    for G in GG: a(f"v_perm_b32 v{G+3}, v{G+3}, v{G+2}, s47")
    for G in GG: a(f"v_permlane32_swap_b32 v{G}, v{G+1}")
    for G in GG: a(f"v_permlane32_swap_b32 v{G+2}, v{G+3}")
    for G, T in zip(GG, (16, 32)): a(f"v_add_f32 v{T}, v{G}, v{G+1}")
    for G, T in zip(GG, (16, 32)): a(f"v_add_f32 v{T+2}, v{G+2}, v{G+3}")
    if d < FD - 1: a("s_branch L_s_red")
a("L_s_red:")
a("s_nop 0")
stamp(13)
count(21)
for G in (16, 32): a(f"v_permlane16_swap_b32 v{G}, v{G+2}")
for G in (16, 32): a(f"v_add_f32 v{G}, v{G}, v{G+2}")
for r in (8, 4, 2, 1):
    for G in (16, 32): dpp("v_add_f32", f"v{G}", f"v{G}", f"v{G}", f"row_ror:{r}")
bf16_round_pair("v16", "v32", "v16", "v32", "v9")
a("v_add_f32 v16, v16, v49")
bf16_round("v16", "v16")
a("v_mul_f32 v50, 0xbfb8aa3b, v16")
a("v_exp_f32 v50, v50")
a("v_add_f32 v50, 1.0, v50")
a("v_rcp_f32 v50, v50")
a("v_mul_f32 v50, v50, v16")
bf16_round("v50", "v50")
a("v_mul_f32 v32, v32, v50")
bf16_round("v32", "v32")
a("v_add_f32 v32, v32, v48")
a("v_cvt_pk_bf16_f32 v32, v32, v32")
a("s_mov_b64 exec, s[32:33]")
a(f"global_store_short {vFO}, v32, s[12:13]")
a("s_cmp_lg_u32 s2, 0")
a("s_cbranch_scc1 L_noep")
a("s_mov_b64 exec, 1")
a("v_mov_b32 v33, s6")
a("v_mov_b32 v34, 0")
a("global_store_dword v34, v33, s[14:15]")
if AMP:
    a("s_memrealtime s[68:69]")
    a("s_waitcnt lgkmcnt(0)")
    a("s_sub_u32 s70, s68, s58")
    a(f"s_mul_i32 s70, s70, {AMP}")
    a("s_min_u32 s70, s70, 100000")
    a("L_amp:")
    a("s_memrealtime s[72:73]")
    a("s_waitcnt lgkmcnt(0)")
    a("s_sub_u32 s71, s72, s68")
    a("s_cmp_lt_u32 s71, s70")
    a("s_cbranch_scc1 L_amp")
a("L_noep:")
stamp(14)
diag_flush()
a("L_end:")
a("s_endpgm")
a(".fill 1024, 4, 0xbf810000")

nv = 176 if DIAG else NVGPR
txt = header
txt += f"; @launch grid=(256,1,1) block=(512,1,1) lds={LDS_BYTES + LDSX}\n"
txt += '.amdgcn_target "amdgcn-amd-amdhsa--gfx950"\n.text\n'
txt += f".globl {NAME}_kernel\n.p2align 8\n.type {NAME}_kernel,@function\n"
txt += a.text()
txt += f""".section .rodata,"a"
.p2align 6
.amdhsa_kernel {NAME}_kernel
  .amdhsa_next_free_vgpr {nv}
  .amdhsa_next_free_sgpr 102
  .amdhsa_accum_offset {nv}
  .amdhsa_group_segment_fixed_size 0
  .amdhsa_kernarg_size 104
  .amdhsa_user_sgpr_count 2
  .amdhsa_user_sgpr_kernarg_segment_ptr 1
  .amdhsa_system_sgpr_workgroup_id_x 1
.end_amdhsa_kernel
"""
open(OUT, "w").write(txt)
```

```python
import sys
sys.path.insert(0, "work")
from asmlib import Asm
NAME = "recurrent_scan__sliding_block_cached__dense_activation_gelu__decode"
DIAG = "--diag" in sys.argv
OUT = [a for a in sys.argv[1:] if not a.startswith("--")][0]
def opt(name, default):
    for x in sys.argv:
        if x.startswith("--" + name + "="): return int(x.split("=")[1])
    return default
NV1 = opt("nv1", 1)
NW1 = opt("nw1", 4)
NOFAST = opt("nofast", 0)
LITE = opt("lite", 0)
AMP = opt("amp", 0)
WARM = opt("warm", 1)
AMODE = opt("amode", 0)
KPRE = opt("kpre", 4)
W1L = opt("w1l", 0)
QL2 = opt("ql2", 0)
KL = opt("kl", 1)

WS_Q = 0x10000
WS_H = 0x40000
WS_F = 0x70000
WS_R = 0x80000
WS_OA = 0x200000
SLOW = 0x300000
WS_DIAG = 0x800000
HSTR = 16512
L_WQ = 0x0000
L_W1 = 0x4000
L_XN = 0x6000
L_QS = 0x6400
L_MX = 0x6800
L_LS = 0x6810
L_FL = 0x6820
L_OR = 0x7000
LDS_BYTES = L_OR + 8 * 3072
SPIN = 1 << 18

a = Asm()
header = open("cdna_kernels/" + NAME + ".s.ref").read().split("; Override launch")[0]
vLANE, vI16, vQ4 = "v1", "v2", "v3"
vM = ["v4", "v5", "v6", "v7"]
vN = ["v126", "v127"]
K0, V0, QB0, G0, PA0, W0 = 16, 32, 48, 64, 80, 108
X0 = 128
NVGPR = 168
vST, vST2 = "v168", "v169"
AC = 56
ZR = 60
vQA, vHD, vOW, vA1, vA2, vA3, vA4, vA5, vA6, vA7 = [f"v{96+i}" for i in range(10)]
def vr(b, n=4): return f"v[{b}:{b+n-1}]"

def stamp(idx):
    if not DIAG: return
    a(f"s_memrealtime s[98:99]")
    a("s_waitcnt lgkmcnt(0)")
    a(f"v_writelane_b32 {vST}, s98, {idx}")
def count(idx):
    if not DIAG: return
    a(f"s_sub_u32 s101, {SPIN}, s100")
    a(f"v_writelane_b32 {vST}, s101, {idx}")
def diag_flush():
    if not DIAG: return
    a("s_mov_b64 exec, -1")
    a("s_lshl_b32 s7, s2, 3")
    a("s_add_u32 s7, s7, s5")
    a("s_lshl_b32 s7, s7, 8")
    a(f"s_add_u32 s7, s7, {WS_DIAG}")
    a("s_add_u32 s98, s14, s7")
    a("s_addc_u32 s99, s15, 0")
    a(f"v_lshlrev_b32 {vST2}, 2, {vLANE}")
    a(f"global_store_dword {vST2}, {vST}, s[98:99]")
def bf16_round_pair(dlo, dhi, slo, shi, tmp):
    a(f"v_cvt_pk_bf16_f32 {tmp}, {slo}, {shi}")
    a(f"v_lshlrev_b32 {dlo}, 16, {tmp}")
    a(f"v_and_b32 {dhi}, 0xffff0000, {tmp}")
def bf16_round(d, s):
    a(f"v_cvt_pk_bf16_f32 {d}, {s}, {s}")
    a(f"v_and_b32 {d}, 0xffff0000, {d}")
def dpp(op, d, s0, s1, ctrl):
    if op == "v_mov_b32": a(f"v_mov_b32_dpp {d}, {s0} {ctrl} row_mask:0xf bank_mask:0xf")
    else: a(f"{op}_dpp {d}, {s0}, {s1} {ctrl} row_mask:0xf bank_mask:0xf")
def row_allreduce(op, x):
    for r in (8, 4, 2, 1): dpp(op, x, x, x, f"row_ror:{r}")
def wave_allreduce(op, x, t):
    row_allreduce(op, x)
    a(f"v_mov_b32 {t}, {x}")
    a(f"v_permlane16_swap_b32 {x}, {t}")
    a(f"{op} {x}, {x}, {t}")
    a(f"v_mov_b32 {t}, {x}")
    a(f"v_permlane32_swap_b32 {x}, {t}")
    a(f"{op} {x}, {x}, {t}")
def sbase(dst, src, off):
    a(f"s_add_u32 s{dst}, s{src}, {off}")
    a(f"s_addc_u32 s{dst+1}, s{src+1}, 0")
def tagcheck(regs, t0="v12", t1="v13"):
    if len(regs) == 1:
        a(f"v_cmp_ne_u32 vcc, s6, v{regs[0]}"); return
    a(f"v_xor_b32 {t0}, s6, v{regs[0]}")
    i = 1
    while i < len(regs):
        a(f"v_xor_b32 {t1}, s6, v{regs[i]}")
        if i + 1 < len(regs):
            a(f"v_xor_b32 v{regs[i+1]}, s6, v{regs[i+1]}")
            a(f"v_or3_b32 {t0}, {t0}, {t1}, v{regs[i+1]}")
            i += 2
        else:
            a(f"v_or_b32 {t0}, {t0}, {t1}")
            i += 1
    a(f"v_cmp_ne_u32 vcc, 0, {t0}")
def pack24(dst, src):
    for n in range(3):
        a(f"v_perm_b32 v{dst+n}, v{src+n}, v{src+3}, s{88+n}")
def kload(n):
    kh, hf = n >> 1, n & 1
    a(f"global_load_dwordx4 {vr(K0+8*kh+4*hf)}, v13, s[18:19] offset:{kh*2048+hf*128} nt")
def vload(n):
    kh, aa = n >> 1, n & 1
    a(f"global_load_dwordx4 {vr(V0+4*n)}, v15, s[20:21] offset:{kh*2048+aa*256} nt")
def pub2(voff, data, base, tag):
    a("s_cmp_lg_u32 s85, 0")
    a(f"s_cbranch_scc1 {tag}_slow")
    a(f"global_store_dwordx4 {voff}, {data}, s[{base}:{base+1}]")
    a(f"s_branch {tag}_done")
    a(f"{tag}_slow:")
    sbase(base, base, SLOW)
    a(f"global_store_dwordx4 {voff}, {data}, s[{base}:{base+1}] sc1")
    a(f"{tag}_done:")

a(f"{NAME}_kernel:")
if DIAG or LITE: a("s_memrealtime s[100:101]")
if AMP: a("s_memrealtime s[58:59]")
a("s_cmp_ge_u32 s2, 256")
a("s_cbranch_scc1 L_end")
a("s_load_dwordx16 s[16:31], s[0:1], 0")
a("s_load_dwordx4 s[8:11], s[0:1], 64")
a("s_load_dwordx2 s[12:13], s[0:1], 80")
a("s_load_dwordx2 s[14:15], s[0:1], 96")
a(f"v_and_b32 {vLANE}, 63, v0")
a("v_lshrrev_b32 v8, 6, v0")
a(f"v_and_b32 {vI16}, 15, v0")
a(f"v_bfe_u32 {vQ4}, v0, 4, 2")
a("v_readfirstlane_b32 s5, v8")
a("s_lshr_b32 s4, s2, 3")
a(f"v_lshlrev_b32 v14, 4, {vLANE}")
a("s_getpc_b64 s[54:55]")
a("s_and_b32 s56, s4, 7")
a("s_cmp_lg_u32 s56, s5")
a("s_cbranch_scc1 L_nopf")
a("s_lshl_b32 s56, s56, 10")
sbase(54, 54, "s56")
a(f"global_load_dwordx4 {vr(X0+32)}, v14, s[54:55]")
a("L_nopf:")
a("s_and_b32 s3, s2, 7")
if DIAG or LITE: a(f"v_mov_b32 {vST}, 0")
a(f"v_bfe_u32 v8, {vLANE}, 1, 3")
a(f"v_and_b32 v9, 1, {vLANE}")
a("v_lshlrev_b32 v9, 4, v9")
a(f"v_lshl_add_u32 v9, {vQ4}, 5, v9")
a("v_lshl_add_u32 v10, v8, 13, v9")
a("v_xor_b32 v11, 0x8000, v10")
a("v_add_u32 v11, 0x10000, v11")
a("s_lshl_b32 s96, s3, 5")
a("s_add_u32 s96, s96, s4")
a("s_lshr_b32 s32, s96, 2")
a("s_lshl_b32 s32, s32, 7")
a("s_and_b32 s97, s4, 3")
a("s_lshl_b32 s33, s97, 3")
a("s_add_u32 s33, s33, s5")
a("s_lshl_b32 s33, s33, 17")
a("s_add_u32 s32, s32, s33")
a("s_lshl_b32 s39, s5, 11")
a("s_mov_b32 m0, s39")
a("s_add_u32 s39, s39, 1024")
a("v_mul_u32_u24 v124, 3584, v8")
a("v_add_u32 v124, v124, v9")
a("v_xor_b32 v125, 4, v8")
a("v_mul_u32_u24 v125, 3584, v125")
a("v_add_u32 v125, v125, v9")
a("s_and_b32 s36, s5, 3")
a("s_lshr_b32 s35, s96, 3")
a("s_lshl_b32 s35, s35, 7")
a("s_and_b32 s34, s96, 7")
a("s_lshl_b32 s34, s34, 2")
a("s_add_u32 s34, s34, s36")
a(f"s_mul_i32 s34, s34, {16*3584}")
a("s_add_u32 s34, s34, s35")
a("s_lshl_b32 s40, s36, 11")
a(f"s_add_u32 s40, s40, {L_W1}")
a(f"v_lshlrev_b32 v13, 7, {vI16}")
a("v_and_b32 v13, 0x700, v13")
a(f"v_and_b32 v12, 1, {vI16}")
a("v_lshl_add_u32 v13, v12, 6, v13")
a(f"v_lshl_add_u32 v13, {vQ4}, 4, v13")
a("s_lshl_b32 s37, s3, 6")
a("s_add_u32 s37, s37, s5")
a("s_lshl_b32 s37, s37, 5")
a("s_add_u32 s37, s37, s4")
a("s_lshl_b32 s37, s37, 12")
a("s_add_u32 s37, s37, 0x700000")
a("s_cmp_lg_u32 s5, 0")
a("s_waitcnt lgkmcnt(0)")
a("s_cbranch_scc1 L_nox")
a(f"global_load_dwordx4 {vr(W0)}, v14, s[16:17]")
a("L_nox:")
sbase(22, 22, "s32")
a("global_load_lds_dwordx4 v10, s[22:23] nt")
a("s_mov_b32 m0, s39")
sbase(18, 18, "s37")
a("global_load_lds_dwordx4 v11, s[22:23] nt")
a("s_load_dword s6, s[14:15], 0")
def w1blk():
    a("s_cmp_lt_u32 s5, 4")
    a("s_cbranch_scc1 L_now1")
    a("s_cmp_ge_u32 s96, 224")
    a("s_cbranch_scc1 L_now1")
    a("s_mov_b32 m0, s40")
    sbase(28, 28, "s34")
    a("global_load_lds_dwordx4 v124, s[28:29] nt")
    a("s_add_u32 s40, s40, 1024")
    a("s_mov_b32 m0, s40")
    sbase(28, 28, 8*3584)
    a("global_load_lds_dwordx4 v125, s[28:29] nt")
    a("L_now1:")
if not W1L: w1blk()
if DIAG: a("s_memrealtime s[84:85]")
a("s_barrier")
kload(0); kload(1)
if W1L: w1blk()
if QL2:
    a("s_cmp_lg_u32 s5, 1")
    a("s_cbranch_scc1 L_noqw")
    a("s_lshl_b32 s56, s96, 9")
    a(f"s_add_u32 s56, s56, {WS_Q}")
    sbase(54, 14, "s56")
    a("s_mov_b32 exec_hi, 0")
    a(f"global_load_dwordx4 {vr(X0+36)}, v14, s[54:55] sc1")
    a("s_mov_b64 exec, -1")
    a("L_noqw:")
if DIAG or LITE: a(f"v_writelane_b32 {vST}, s100, 0")
a("s_cmp_lg_u32 s5, 0")
a("s_cbranch_scc1 L_noln")
a("v_mov_b32 v8, 0")
for i in range(4): a(f"v_mov_b32 v{W0+4+i}, 0xff800000")
for i in range(4): a(f"v_mov_b32 v{W0+8+i}, 0")
a("s_mov_b64 exec, 1")
a(f"ds_write_b128 v8, {vr(W0+4)} offset:{L_MX}")
a(f"ds_write_b128 v8, {vr(W0+8)} offset:{L_LS}")
a(f"ds_write_b64 v8, v[{W0+8}:{W0+9}] offset:{L_FL}")
a("s_mov_b64 exec, -1")
a("s_waitcnt vmcnt(4)")
if DIAG: a("s_memrealtime s[94:95]")
X = [f"v{V0+i}" for i in range(8)]
for d in range(4):
    a(f"v_lshlrev_b32 {X[2*d]}, 16, v{W0+d}")
    a(f"v_and_b32 {X[2*d+1]}, 0xffff0000, v{W0+d}")
a(f"v_pk_add_f32 v[8:9], v[{V0}:{V0+1}], v[{V0+2}:{V0+3}]")
a(f"v_pk_add_f32 v[10:11], v[{V0+4}:{V0+5}], v[{V0+6}:{V0+7}]")
a("v_pk_add_f32 v[8:9], v[8:9], v[10:11]")
a("v_add_f32 v8, v8, v9")
wave_allreduce("v_add_f32", "v8", "v9")
a("v_mul_f32 v8, 0x3b000000, v8")
D = [f"v{V0+8+i}" for i in range(8)]
for i in range(8): a(f"v_sub_f32 {D[i]}, {X[i]}, v8")
a(f"v_mul_f32 v10, {D[0]}, {D[0]}")
a(f"v_mul_f32 v11, {D[1]}, {D[1]}")
for i in range(2, 8): a(f"v_fmac_f32 v{10+(i&1)}, {D[i]}, {D[i]}")
a("v_add_f32 v10, v10, v11")
bf16_round("v8", "v8")
for r in (8, 4, 2, 1):
    dpp("v_add_f32", "v10", "v10", "v10", f"row_ror:{r}")
    k = {8: 0, 4: 2, 2: 4, 1: 6}[r]
    a(f"v_sub_f32 {D[k]}, {X[k]}, v8")
    a(f"v_sub_f32 {D[k+1]}, {X[k+1]}, v8")
a("v_mov_b32 v9, v10")
bf16_round_pair(D[0], D[1], D[0], D[1], "v11")
a("v_permlane16_swap_b32 v10, v9")
a("v_add_f32 v10, v10, v9")
a("v_mov_b32 v9, v10")
bf16_round_pair(D[2], D[3], D[2], D[3], "v11")
a("v_permlane32_swap_b32 v10, v9")
a("v_add_f32 v10, v10, v9")
a("v_mul_f32 v10, 0x3b000000, v10")
bf16_round("v10", "v10")
a("v_add_f32 v10, 0x3727c5ac, v10")
bf16_round("v10", "v10")
a("v_sqrt_f32 v10, v10")
bf16_round_pair(D[4], D[5], D[4], D[5], "v11")
bf16_round("v10", "v10")
a("v_rcp_f32 v10, v10")
bf16_round_pair(D[6], D[7], D[6], D[7], "v11")
for i in range(8): a(f"v_mul_f32 {D[i]}, {D[i]}, v10")
for d in range(4): a(f"v_cvt_pk_bf16_f32 v{W0+d}, {D[2*d]}, {D[2*d+1]}")
a(f"ds_write_b128 v14, {vr(W0)} offset:{L_XN}")
a("L_noln:")
sbase(20, 20, "s37")
a("s_getreg_b32 s86, hwreg(HW_REG_XCC_ID, 0, 4)")
if NOFAST: a("s_add_u32 s86, s86, s2")
a(f"v_lshlrev_b32 v15, 9, {vQ4}")
a(f"v_lshl_add_u32 v15, {vI16}, 4, v15")
a("v_cmp_eq_u32 vcc, 1, v12")
a("v_mov_b32 v9, 0xffff")
a("v_mov_b32 v10, 0xffff0000")
a("v_cndmask_b32 v9, v9, v10, vcc")
a("s_mov_b64 s[92:93], vcc")
a(f"v_bfe_u32 v8, {vI16}, 1, 2")
for d in range(4):
    a(f"v_cmp_eq_u32 vcc, {d}, v8")
    a(f"v_cndmask_b32 {vM[d]}, 0, v9, vcc")
a(f"v_or_b32 {vN[0]}, {vM[0]}, {vM[2]}")
a(f"v_or_b32 {vN[1]}, {vM[1]}, {vM[3]}")
for p in (44, 46, 62, 64, 66, 68): a(f"s_mov_b64 s[{p}:{p+1}], s[14:15]")
for r in range(99, 106): a(f"v_mov_b32 v{r}, 0")
for i in range(4): a(f"v_mov_b32 v{ZR+i}, 0")
a("s_mov_b32 s88, 0x07060503")
a("s_mov_b32 s89, 0x07060502")
a("s_mov_b32 s90, 0x07060501")
a("s_mov_b32 s80, 0x3db504f3")
a("s_mov_b32 s81, 0x3fb8aa3b")
a("s_mov_b32 s82, 0x11111111")
a("s_mov_b32 s83, 0x11111111")
a(f"v_lshrrev_b32 v8, 2, {vI16}")
a(f"v_lshlrev_b32 {vHD}, 2, v8")
a("v_lshlrev_b32 v8, 8, v8")
a(f"v_lshl_add_u32 v8, {vQ4}, 4, v8")
a(f"v_lshl_add_u32 {vQA}, v12, 6, v8")
a("s_mul_i32 s32, s5, 3072")
a(f"v_mul_u32_u24 {vOW}, 768, {vQ4}")
a(f"v_lshl_add_u32 {vOW}, {vI16}, 4, {vOW}")
a(f"v_add_u32 {vOW}, s32, {vOW}")
a("s_lshl_b32 s32, s36, 8")
a(f"v_lshlrev_b32 v8, 10, {vQ4}")
a(f"v_lshl_add_u32 v8, {vI16}, 3, v8")
a("v_add_u32 v8, s32, v8")
a(f"v_and_b32 v9, 1, {vQ4}")
a("v_lshlrev_b32 v9, 7, v9")
a("v_add_u32 v10, v8, v9")
a("v_xor_b32 v9, 128, v9")
a("v_add_u32 v11, v8, v9")
a(f"v_lshlrev_b32 v124, 4, {vQ4}")
a(f"v_lshlrev_b32 v125, 3, {vLANE}")
a(f"s_mul_i32 s41, s3, {0x14000}")
a(f"s_add_u32 s41, s41, {WS_R}")
a(f"v_and_b32 v8, 3, {vI16}")
a("v_lshlrev_b32 v8, 5, v8")
a(f"v_lshl_add_u32 v8, {vQ4}, 4, v8")
a(f"v_lshrrev_b32 v9, 2, {vI16}")
def partial(nsteps, lbase, XA):
    for t in range(nsteps):
        a(f"ds_read_b128 {vr(XA+4*t)}, v124 offset:{L_XN + t*64}")
        b = PA0 + 4*t
        a(f"ds_read_b64_tr_b16 v[{b}:{b+1}], v10 offset:{lbase + t*4096}")
        a(f"ds_read_b64_tr_b16 v[{b+2}:{b+3}], v11 offset:{lbase + t*4096}")
    if nsteps == 4: a(f"v_mov_b32 v{QB0+2}, s86")
    else: a(f"v_mov_b32 v{QB0+1}, s6")
    a(f"v_mov_b32 v{QB0+3}, s6")
    for t in range(nsteps):
        a(f"s_waitcnt lgkmcnt({3*(nsteps-1-t)})")
        c = "0" if t == 0 else vr(AC)
        a(f"v_mfma_f32_16x16x32_bf16 {vr(AC)}, {vr(XA+4*t)}, {vr(PA0+4*t)}, {c}")
def partial_fin(k, dual=0):
    a(f"v_mov_b32 v{QB0}, v{AC}")
    dpp("v_mov_b32", f"v{QB0+k}", f"v{AC}", None, "quad_perm:[1,0,3,2]")
    a("s_mov_b64 exec, 0x5555")
    if dual:
        if not NOFAST: a(f"global_store_dwordx4 v125, {vr(QB0)}, s[42:43]")
        a(f"global_store_dwordx4 v125, {vr(QB0)}, s[52:53] sc1")
    else:
        a(f"global_store_dwordx4 v125, {vr(QB0)}, s[42:43] sc1")
    a("s_mov_b64 exec, -1")
def tagcalc():
    a("s_waitcnt lgkmcnt(0)")
    if DIAG:
        a(f"v_writelane_b32 {vST}, s94, 15")
        a(f"v_writelane_b32 {vST}, s84, 23")
    stamp(16)
    a("s_lshr_b32 s6, s6, 1")
    a("s_mul_i32 s6, s6, 0x5DEECE6D")
    a("s_add_u32 s6, s6, 0xB")
    a("s_lshl_b32 s6, s6, 1")
    a("s_or_b32 s6, s6, 1")
HG = X0 + 28
B1R = X0 + 36
def hgather():
    a(f"global_load_dwordx4 {vr(HG)}, v{W0}, s[44:45] sc1")
    a(f"global_load_dwordx4 {vr(HG+4)}, v{W0}, s[44:45] offset:16 sc1")
a("s_cmp_ge_u32 s5, 4")
a("s_cbranch_scc1 L_B0b")
a(f"v_lshl_add_u32 {vA2}, v9, 12, v8")
a("s_and_b32 s32, s4, 28")
a("s_add_u32 s32, s32, s5")
a("s_lshl_b32 s33, s97, 14")
a("s_lshl_b32 s34, s32, 7")
a("s_add_u32 s33, s33, s34")
a("s_add_u32 s33, s33, s41")
sbase(60, 14, "s33")
for n in range(2, KPRE): kload(n)
a("s_lshl_b32 s33, s3, 5")
a("s_add_u32 s91, s32, s33")
a("s_lshl_b32 s32, s91, 14")
a("s_lshl_b32 s33, s97, 8")
a("s_add_u32 s32, s32, s33")
sbase(24, 24, "s32")
a("s_lshl_b32 s32, s91, 12")
a(f"s_add_u32 s32, s32, {WS_OA}")
sbase(62, 14, "s32")
a(f"v_lshlrev_b32 {vA3}, 12, {vQ4}")
a(f"v_lshl_add_u32 {vA3}, {vI16}, 4, {vA3}")
a(f"v_lshrrev_b32 v8, 1, {vI16}")
a("v_lshlrev_b32 v8, 7, v8")
a(f"v_lshl_add_u32 v8, {vQ4}, 5, v8")
a(f"v_lshl_add_u32 {vA1}, v12, 4, v8")
a("s_lshl_b32 s32, s97, 8")
a("v_add_u32 v124, s32, v124")
a("s_lshl_b32 s32, s3, 14")
a("s_lshl_b32 s33, s97, 12")
a("s_add_u32 s33, s32, s33")
a("s_lshr_b32 s34, s4, 2")
a("s_lshl_b32 s34, s34, 2")
a("s_add_u32 s34, s34, s5")
a("s_lshl_b32 s34, s34, 7")
a("s_add_u32 s33, s33, s34")
a(f"s_add_u32 s33, s33, {WS_Q}")
sbase(42, 14, "s33")
a("s_lshl_b32 s33, s5, 10")
a("s_add_u32 s32, s32, s33")
a(f"s_add_u32 s32, s32, {WS_Q + 4096}")
sbase(44, 14, "s32")
sbase(46, 44, 8192)
a("s_lshl_b32 s32, s5, 8")
a(f"v_lshl_add_u32 {vA4}, {vLANE}, 2, s32")
tagcalc()
if QL2:
    a("s_cmp_eq_u32 s5, 1")
    a("s_cbranch_scc1 L_aw1")
a(f"s_waitcnt vmcnt({KPRE})")
if QL2:
    a("L_aw1:")
    a(f"s_waitcnt vmcnt({KPRE+1})")
    sbase(52, 42, SLOW)
stamp(2)
a("s_barrier")
partial(4, L_WQ, G0)
partial_fin(1, QL2)
stamp(4)
a("s_barrier")
for n in range(KPRE, 4): kload(n)
def woload(rg): a(f"global_load_dwordx4 {vr(W0+4*rg)}, {vA3}, s[24:25] offset:{rg*1024} nt")
for n in range(NV1): vload(n)
for n in range(4): woload(n)
stamp(1)
a("s_barrier")
def qgather():
    a(f"global_load_dwordx4 {vr(G0)}, v14, s[44:45] offset:-4096 sc1")
    a(f"global_load_dwordx4 {vr(G0+4)}, v14, s[44:45] sc1")
    a(f"global_load_dwordx4 {vr(G0+8)}, v14, s[46:47] offset:-4096 sc1")
    a(f"global_load_dwordx4 {vr(G0+12)}, v14, s[46:47] sc1")
qgather()
stamp(22)
a("s_barrier")
for n in range(NV1, 4): vload(n)
stamp(5)
a(f"s_mov_b32 s100, {SPIN}")
a("s_mov_b32 s87, 1")
if QL2: a(f"s_mov_b32 s57, {(-SLOW) & 0xffffffff}")
a(f"s_waitcnt vmcnt({4 - NV1})")
stamp(19)
a("s_branch L_qchk")
a("L_qpoll:")
if QL2:
    a(f"s_xor_b32 s57, s57, {SLOW ^ ((-SLOW) & 0xffffffff)}")
    a("s_ashr_i32 s56, s57, 31")
    a("s_add_u32 s44, s44, s57")
    a("s_addc_u32 s45, s45, s56")
    a("s_add_u32 s46, s46, s57")
    a("s_addc_u32 s47, s47, s56")
qgather()
a("s_waitcnt vmcnt(0)")
a("L_qchk:")
tagcheck([G0 + 3 + 4*n for n in range(4)])
a("s_sub_u32 s100, s100, 1")
a("s_cbranch_scc1 L_qgot")
a("s_cbranch_vccnz L_qpoll")
a("L_qgot:")
a(f"v_pk_add_f32 v[{G0}:{G0+1}], v[{G0}:{G0+1}], v[{G0+4}:{G0+5}]")
a(f"v_pk_add_f32 v[{G0+8}:{G0+9}], v[{G0+8}:{G0+9}], v[{G0+12}:{G0+13}]")
a(f"v_xor_b32 v12, s86, v{G0+2}")
a(f"v_pk_add_f32 v[{G0}:{G0+1}], v[{G0}:{G0+1}], v[{G0+8}:{G0+9}]")
a(f"v_xor_b32 v13, s86, v{G0+6}")
a(f"v_xor_b32 v{G0+10}, s86, v{G0+10}")
a(f"v_cvt_pk_bf16_f32 v8, v{G0}, v{G0+1}")
a(f"v_xor_b32 v{G0+14}, s86, v{G0+14}")
a(f"ds_write_b32 {vA4}, v8 offset:{L_QS}")
a(f"v_or3_b32 v12, v12, v13, v{G0+10}")
a(f"v_or_b32 v12, v12, v{G0+14}")
a("v_cmp_ne_u32 vcc, 0, v12")
count(20)
a("s_cbranch_vccz L_B1")
a("v_mov_b32 v13, 1")
a(f"ds_write_b32 v{ZR}, v13 offset:{L_FL}")
a("s_branch L_B1")
a("L_B0b:")
a(f"v_lshrrev_b32 v12, 3, {vLANE}")
a("v_lshlrev_b32 v12, 12, v12")
a(f"v_and_b32 {vA2}, 7, {vLANE}")
a(f"v_lshl_add_u32 {vA2}, {vA2}, 4, v12")
a("s_lshl_b32 s32, s3, 17")
a("s_lshl_b32 s33, s36, 15")
a("s_add_u32 s32, s32, s33")
a("s_lshl_b32 s33, s4, 7")
a("s_add_u32 s32, s32, s33")
a(f"s_add_u32 s32, s32, {WS_OA}")
sbase(60, 14, "s32")
a(f"v_lshl_add_u32 {vA4}, v9, 10, v8")
a("s_lshl_b32 s32, s97, 12")
a("s_lshr_b32 s33, s4, 2")
a("s_lshl_b32 s33, s33, 7")
a("s_add_u32 s32, s32, s33")
a("s_add_u32 s32, s32, s41")
a("s_add_u32 s32, s32, 0x10000")
sbase(62, 14, "s32")
for n in range(2, KPRE): kload(n)
a("s_and_b32 s33, s96, 7")
a("s_lshl_b32 s32, s33, 7")
a("v_add_u32 v124, s32, v124")
a(f"s_mul_i32 s32, s33, {HSTR}")
a("s_lshr_b32 s33, s96, 3")
a("s_lshl_b32 s33, s33, 9")
a("s_add_u32 s32, s32, s33")
a("s_lshl_b32 s33, s36, 7")
a("s_add_u32 s32, s32, s33")
a(f"s_add_u32 s32, s32, {WS_H}")
sbase(42, 14, "s32")
a("s_lshr_b32 s7, s96, 2")
a("s_mul_i32 s7, s7, 28")
a("s_lshl_b32 s32, s7, 3")
a(f"s_add_u32 s32, s32, {WS_H}")
sbase(44, 14, "s32")
a("s_lshl_b32 s32, s7, 10")
a("s_lshl_b32 s33, s97, 8")
a("s_add_u32 s32, s32, s33")
sbase(8, 8, "s32")
a("s_lshl_b32 s32, s7, 1")
sbase(30, 30, "s32")
a(f"v_and_b32 v{W0}, 7, {vI16}")
a(f"v_mul_u32_u24 v{W0}, {HSTR}, v{W0}")
a(f"v_mul_u32_u24 v{W0+1}, 7, {vQ4}")
a(f"v_lshrrev_b32 v{W0+3}, 3, {vI16}")
a(f"v_lshl_add_u32 v{W0+3}, v{W0+3}, 2, v{W0+1}")
a(f"v_lshl_add_u32 v{W0}, v{W0+3}, 3, v{W0}")
a(f"v_lshlrev_b32 v{W0+3}, 1, v{W0+3}")
a(f"v_min_u32 v{W0+4}, 48, v{W0+3}")
a(f"v_lshlrev_b32 v{W0+1}, 10, v{W0+1}")
a(f"v_lshl_add_u32 v{W0+1}, {vI16}, 4, v{W0+1}")
a(f"v_add_u32 v{W0+2}, 4096, v{W0+1}")
a("s_mul_i32 s33, s36, 768")
a(f"v_bfe_u32 v9, {vLANE}, 1, 1")
a("v_mul_u32_u24 v9, 384, v9")
a(f"v_lshrrev_b32 v8, 2, {vLANE}")
a("v_lshl_add_u32 v9, v8, 4, v9")
a(f"v_and_b32 v8, 1, {vLANE}")
a("v_lshl_add_u32 v9, v8, 3, v9")
a(f"v_add_u32 {vA1}, s33, v9")
a("s_lshl_b32 s33, s36, 2")
a(f"v_mov_b32 {vA3}, s33")
a("s_and_b32 s32, s4, 15")
a("s_lshl_b32 s33, s32, 12")
a("s_add_u32 s33, s33, s41")
sbase(64, 14, "s33")
a("s_lshl_b32 s33, s32, 10")
a("s_add_u32 s33, s33, s41")
a("s_add_u32 s33, s33, 0x10000")
sbase(66, 14, "s33")
a("s_lshl_b32 s33, s32, 12")
a("s_lshl_b32 s34, s3, 7")
a("s_add_u32 s33, s33, s34")
a(f"s_add_u32 s33, s33, {WS_F}")
sbase(68, 14, "s33")
a(f"v_and_b32 v8, 1, {vQ4}")
a("v_lshlrev_b32 v8, 1, v8")
a(f"v_lshrrev_b32 v9, 1, {vQ4}")
a("v_add_u32 v8, v8, v9")
a(f"v_and_b32 v9, 1, {vI16}")
a("v_lshl_add_u32 v8, v9, 2, v8")
a(f"v_bfe_u32 v9, {vI16}, 1, 2")
a("v_lshlrev_b32 v9, 10, v9")
a(f"v_lshl_add_u32 {vA5}, v8, 4, v9")
a("s_and_b32 s32, s4, 7")
a("s_lshl_b32 s33, s3, 3")
a("s_add_u32 s32, s32, s33")
a("s_lshl_b32 s33, s32, 10")
a(f"s_add_u32 s33, s33, {WS_F}")
sbase(46, 14, "s33")
a("s_lshl_b32 s33, s32, 4")
sbase(16, 16, "s33")
sbase(10, 10, "s33")
sbase(12, 12, "s33")
a(f"v_and_b32 {vA6}, 7, {vLANE}")
a(f"v_lshlrev_b32 {vA6}, 1, {vA6}")
tagcalc()
if W1L:
    a("s_cmp_lt_u32 s96, 224")
    a("s_cbranch_scc1 L_bw1")
a(f"s_waitcnt vmcnt({KPRE})")
if W1L:
    a("L_bw1:")
    a(f"s_waitcnt vmcnt({KPRE+2})")
stamp(2)
a("s_barrier")
if not W1L:
    partial(2, L_W1, G0)
    partial_fin(2)
stamp(4)
a("s_barrier")
for n in range(KPRE, 4): kload(n)
for n in range(NV1): vload(n)
if W1L: a(f"s_waitcnt vmcnt({2 + NV1})")
a("s_mov_b32 s87, 0")
a("s_cmp_lg_u32 s5, 4")
a("s_cbranch_scc1 L_now2")
for rg in range(7):
    if rg < 4: a(f"global_load_dwordx4 {vr(X0+4*rg)}, v{W0+1}, s[8:9] offset:{rg*1024} nt")
    else: a(f"global_load_dwordx4 {vr(X0+4*rg)}, v{W0+2}, s[8:9] offset:{(rg-4)*1024} nt")
for n in range(3):
    a(f"global_load_ushort v{B1R+n}, v{W0+3}, s[30:31] offset:{2*n}")
a(f"global_load_ushort v{B1R+3}, v{W0+4}, s[30:31] offset:6")
a("s_mov_b32 s87, 2")
a("L_now2:")
a("s_cmp_lg_u32 s5, 5")
a("s_cbranch_scc1 L_nof")
a("s_lshr_b32 s32, s4, 3")
a("s_cmp_lt_u32 s32, 2")
a("s_cselect_b32 s87, 3, 0")
a("s_cmp_lg_u32 s32, 2")
a("s_cbranch_scc1 L_nof")
a(f"global_load_ushort v{X0}, {vA6}, s[16:17]")
a(f"global_load_ushort v{X0+1}, {vA6}, s[10:11]")
a(f"global_load_dwordx4 {vr(X0+4)}, v14, s[46:47] sc1")
a("L_nof:")
stamp(1)
a("s_barrier")
if W1L:
    partial(2, L_W1, G0)
    partial_fin(2)
a("s_barrier")
for n in range(NV1, 4): vload(n)
a(f"s_waitcnt vmcnt({4 - NV1})")
a("L_B1:")
a("s_waitcnt lgkmcnt(0)")
stamp(6)
a("s_barrier")
for hf in range(2):
    a(f"ds_read_b128 {vr(QB0+4*hf)}, {vQA} offset:{L_QS + hf*128}")
a(f"ds_read_b32 v11, v{ZR} offset:{L_FL}")
DD = lambda kh: G0 + 4*kh
for hf in range(2):
    a(f"s_waitcnt lgkmcnt({2-hf})")
    for kh in range(2):
        c = "0" if hf == 0 else vr(DD(kh))
        a(f"v_mfma_f32_16x16x32_bf16 {vr(DD(kh))}, {vr(K0+8*kh+4*hf)}, {vr(QB0+4*hf)}, {c}")
a("s_cmp_eq_u32 s87, 0")
a("s_cbranch_scc1 L_lated")
a("s_cmp_eq_u32 s87, 1")
a("s_cbranch_scc1 L_late1")
a("s_cmp_eq_u32 s87, 2")
a("s_cbranch_scc1 L_late2")
for u in range(4):
    a(f"global_load_dwordx4 {vr(X0+4*u)}, v14, s[64:65] offset:{u*1024} sc1")
a(f"global_load_dwordx4 {vr(X0+16)}, v14, s[66:67] sc1")
a("s_branch L_lated")
a("L_late2:")
hgather()
a("s_branch L_lated")
a("L_late1:")
for u in range(4):
    a(f"global_load_dwordx4 {vr(X0+4*u)}, {vA1}, s[62:63] offset:{u*1024} sc1")
a("L_lated:")
a("s_waitcnt lgkmcnt(0)")
a("v_readfirstlane_b32 s85, v11")
a("s_nop 3")
a(f"s_mov_b32 s100, {SPIN}")
S = [f"v{G0+8+n}" for n in range(4)]
for kh in range(2):
    for aa in range(2):
        d = DD(kh) + 2*aa
        a(f"v_cndmask_b32 {S[kh*2+aa]}, v{d}, v{d+1}, s[92:93]")
for n in range(4): dpp("v_add_f32", S[n], S[n], S[n], "quad_perm:[1,0,3,2]")
a(f"v_cvt_pk_bf16_f32 v9, {S[0]}, {S[1]}")
a(f"v_cvt_pk_bf16_f32 v10, {S[2]}, {S[3]}")
a(f"v_lshlrev_b32 {S[0]}, 16, v9")
a(f"v_and_b32 {S[1]}, 0xffff0000, v9")
a(f"v_lshlrev_b32 {S[2]}, 16, v10")
a(f"v_and_b32 {S[3]}, 0xffff0000, v10")
for n in range(4): a(f"v_mul_f32 {S[n]}, s80, {S[n]}")
a(f"v_cvt_pk_bf16_f32 v9, {S[0]}, {S[1]}")
a(f"v_cvt_pk_bf16_f32 v10, {S[2]}, {S[3]}")
a(f"v_lshlrev_b32 {S[0]}, 16, v9")
a(f"v_and_b32 {S[1]}, 0xffff0000, v9")
a(f"v_lshlrev_b32 {S[2]}, 16, v10")
a(f"v_and_b32 {S[3]}, 0xffff0000, v10")
a(f"v_max3_f32 v10, {S[0]}, {S[1]}, {S[2]}")
a(f"v_max_f32 v10, v10, {S[3]}")
a("s_mov_b64 exec, s[82:83]")
a(f"ds_max_f32 {vHD}, v10 offset:{L_MX}")
a("s_mov_b64 exec, -1")
a("s_waitcnt lgkmcnt(0)")
stamp(7)
a("s_barrier")
a(f"ds_read_b32 v10, {vHD} offset:{L_MX}")
a("s_waitcnt lgkmcnt(0)")
a("v_mul_f32 v10, s81, v10")
for n in range(4): a(f"v_fma_f32 {S[n]}, {S[n]}, s81, -v10")
for n in range(4): a(f"v_exp_f32 {S[n]}, {S[n]}")
ACC = [QB0, QB0 + 4]
for n in range(4):
    a(f"v_cvt_pk_bf16_f32 v{G0+12+n}, {S[n]}, {S[n]}")
for n in range(4):
    for d in range(2): a(f"v_and_b32 v{PA0+2*n+d}, v{G0+12+n}, {vN[d]}")
def pvm(m):
    for hl in range(2):
        c = "0" if m == 0 else vr(ACC[hl])
        a(f"v_mfma_f32_16x16x16_bf16 {vr(ACC[hl])}, {vr(PA0+2*m, 2)}, {vr(V0+4*m+2*hl, 2)}, {c}")
for m in range(NV1): pvm(m)
a(f"v_add_f32 v12, {S[0]}, {S[1]}")
a(f"v_add_f32 v13, {S[2]}, {S[3]}")
a("v_add_f32 v10, v12, v13")
a("s_mov_b64 exec, s[82:83]")
a(f"ds_add_f32 {vHD}, v10 offset:{L_LS}")
a("s_mov_b64 exec, -1")
a("v_mov_b32 v19, s6")
stamp(8)
if NV1 < 4:
    for code, wv in ((2, 2), (1, 4), (3, 5)):
        a(f"s_cmp_eq_u32 s87, {code}")
        a(f"s_cbranch_scc1 L_vw{wv}")
    for wv in (0, 2, 4, 5):
        if wv: a(f"L_vw{wv}:")
        a(f"s_waitcnt vmcnt({wv})")
    stamp(18)
    for m in range(NV1, 4): pvm(m)
a("s_cmp_lt_u32 s5, 4")
for hl in range(2):
    a(f"ds_write_b128 {vOW}, {vr(ACC[hl])} offset:{L_OR + hl*384}")
a("s_waitcnt lgkmcnt(0)")
stamp(9)
a("s_barrier")
a("s_cbranch_scc1 L_wo")
a(f"ds_read_b32 v11, {vA3} offset:{L_LS}")
a(f"ds_read_b32 v12, {vA3} offset:{L_MX}")
for w in range(8):
    a(f"ds_read_b64 v[{32+2*w}:{33+2*w}], {vA1} offset:{L_OR + w*3072}")
a("s_waitcnt lgkmcnt(8)")
a("v_log_f32 v13, v11")
a("v_rcp_f32 v11, v11")
a("v_fma_f32 v18, v12, s81, v13")
a("s_waitcnt lgkmcnt(4)")
a("v_pk_add_f32 v[32:33], v[32:33], v[34:35]")
a("v_pk_add_f32 v[36:37], v[36:37], v[38:39]")
a("s_waitcnt lgkmcnt(0)")
a("v_pk_add_f32 v[40:41], v[40:41], v[42:43]")
a("v_pk_add_f32 v[44:45], v[44:45], v[46:47]")
a("v_pk_add_f32 v[32:33], v[32:33], v[36:37]")
a("v_pk_add_f32 v[40:41], v[40:41], v[44:45]")
a("v_pk_add_f32 v[32:33], v[32:33], v[40:41]")
a("v_mul_f32 v16, v32, v11")
a("v_mul_f32 v17, v33, v11")
pub2(vA2, "v[16:19]", 60, "L_op")
stamp(10)
a("s_cmp_eq_u32 s5, 4")
a("s_cbranch_scc1 L_ffn2")
a("s_cmp_lg_u32 s5, 5")
a("s_cbranch_scc1 L_done")
a("s_cmp_lt_u32 s4, 24")
a("s_cbranch_scc1 L_tail")
a("L_done:")
if AMODE:
    a("s_cmp_lg_u32 s5, 7")
    a("s_cbranch_scc1 L_noes")
    a("s_lshl_b32 s32, s2, 3")
    a(f"s_add_u32 s32, s32, {WS_DIAG}")
    sbase(60, 14, "s32")
    a("v_mov_b32 v16, s58")
    a("v_mov_b32 v17, s6")
    a("s_mov_b64 exec, 1")
    a(f"global_store_dwordx2 v{ZR}, v[16:17], s[60:61] sc1")
    a("L_noes:")
if LITE:
    DIAG = 1; diag_flush(); DIAG = 0
diag_flush()
a("s_endpgm")
a("L_ffn2:")
a(f"v_cmp_gt_u32 s[40:41], 8, {vI16}")
a("s_waitcnt vmcnt(1)")
a("s_branch L_hchk")
a("L_hpoll:")
hgather()
a("s_waitcnt vmcnt(0)")
a("L_hchk:")
a("v_mov_b32 v14, s6")
a(f"v_cndmask_b32 v14, v14, v{HG+7}, s[40:41]")
tagcheck([HG+1, HG+3, HG+5, 14])
a("s_sub_u32 s100, s100, 1")
a("s_cbranch_scc1 L_hgot")
a("s_cbranch_vccnz L_hpoll")
a("L_hgot:")
H = [f"v{HG+2*n}" for n in range(4)]
for ctrl in ("quad_perm:[1,0,3,2]", "quad_perm:[2,3,0,1]", "row_half_mirror"):
    for n in range(4): dpp("v_add_f32", H[n], H[n], H[n], ctrl)
a("v_mov_b32 v30, 0x3d372713")
T4 = [f"v{32+n}" for n in range(4)]
for n in (0, 2): bf16_round_pair(H[n], H[n+1], H[n], H[n+1], "v9")
for n in range(4): a(f"v_lshlrev_b32 v{B1R+n}, 16, v{B1R+n}")
for n in range(4): a(f"v_add_f32 {H[n]}, {H[n]}, v{B1R+n}")
for n in (0, 2): bf16_round_pair(H[n], H[n+1], H[n], H[n+1], "v9")
for n in range(4): a(f"v_mul_f32 {T4[n]}, {H[n]}, {H[n]}")
for n in range(4): a(f"v_fma_f32 {T4[n]}, {T4[n]}, v30, 1.0")
for n in range(4): a(f"v_mul_f32 {T4[n]}, {T4[n]}, {H[n]}")
for n in range(4): a(f"v_mul_f32 {T4[n]}, 0xc0135761, {T4[n]}")
for n in range(4): a(f"v_exp_f32 {T4[n]}, {T4[n]}")
for n in range(4): a(f"v_add_f32 {T4[n]}, 1.0, {T4[n]}")
for n in range(4): a(f"v_rcp_f32 {T4[n]}, {T4[n]}")
for n in range(4): a(f"v_mul_f32 {H[n]}, {H[n]}, {T4[n]}")
for n in range(4): a(f"v_cvt_pk_bf16_f32 v{20+n}, {H[n]}, {H[n]}")
for n in range(3): dpp("v_mov_b32", f"v{24+n}", f"v{20+n}", None, "row_ror:8")
for rg in range(7):
    for d in range(4): a(f"v_and_b32 v{G0+4*rg+d}, v{20+rg}, {vM[d]}")
for rg in range(7):
    c = "0" if rg == 0 else vr(AC)
    a(f"v_mfma_f32_16x16x32_bf16 {vr(AC)}, {vr(G0+4*rg)}, {vr(X0+4*rg)}, {c}")
a("s_mov_b32 exec_hi, 0")
pack24(16, AC)
pub2(vA4, "v[16:19]", 62, "L_yp")
stamp(11)
diag_flush()
a("s_endpgm")
a("L_wo:")
a("s_cmp_eq_u32 s85, 0")
a("s_cbranch_scc1 L_opoll")
sbase(62, 62, SLOW)
OG0 = 32
a("L_opoll:")
for u in range(4):
    a(f"global_load_dwordx4 {vr(OG0+4*u)}, {vA1}, s[62:63] offset:{u*1024} sc1")
a("s_sub_u32 s100, s100, 1")
a("s_cbranch_scc1 L_ogot")
a("s_waitcnt vmcnt(0)")
tagcheck([OG0 + 3 + 4*n for n in range(4)])
a("s_cbranch_vccnz L_opoll")
a("L_ogot:")
a("s_waitcnt vmcnt(0)")
a(f"v_max3_f32 v12, v{OG0+2}, v{OG0+6}, v{OG0+10}")
a(f"ds_write_b32 v{ZR}, v19 offset:{L_FL+4}")
a(f"v_max_f32 v12, v12, v{OG0+14}")
stamp(11)
count(21)
for r in (8, 4, 2): dpp("v_max_f32", "v12", "v12", "v12", f"row_ror:{r}")
for u in range(4): a(f"v_sub_f32 v{OG0+4*u+2}, v{OG0+4*u+2}, v12")
for u in range(4): a(f"v_exp_f32 v{OG0+4*u+2}, v{OG0+4*u+2}")
a(f"v_mul_f32 v12, v{OG0+2}, v{OG0}")
a(f"v_mul_f32 v13, v{OG0+2}, v{OG0+1}")
a(f"v_add_f32 v14, v{OG0+2}, v{OG0+6}")
a(f"v_add_f32 v9, v{OG0+10}, v{OG0+14}")
for u in range(1, 4):
    a(f"v_fmac_f32 v12, v{OG0+4*u+2}, v{OG0+4*u}")
    a(f"v_fmac_f32 v13, v{OG0+4*u+2}, v{OG0+4*u+1}")
    if u == 1: a("v_add_f32 v14, v14, v9")
for r in (8, 4, 2):
    for x in ("v14", "v12", "v13"): dpp("v_add_f32", x, x, x, f"row_ror:{r}")
a("v_rcp_f32 v14, v14")
a("v_mul_f32 v12, v12, v14")
a("v_mul_f32 v13, v13, v14")
a("v_cvt_pk_bf16_f32 v12, v12, v12")
a("v_cvt_pk_bf16_f32 v13, v13, v13")
srcs = [("v12", "[0,0,2,2]"), ("v13", "[0,0,2,2]"), ("v12", "[1,1,3,3]"), ("v13", "[1,1,3,3]")]
for rg in range(4):
    for d in range(4):
        dpp("v_and_b32", f"v{PA0+4*rg+d}", srcs[rg][0], vM[d], f"quad_perm:{srcs[rg][1]}")
    if rg >= 1:
        c = "0" if rg == 1 else vr(AC)
        a(f"v_mfma_f32_16x16x32_bf16 {vr(AC)}, {vr(PA0+4*(rg-1))}, {vr(W0+4*(rg-1))}, {c}")
a(f"v_mfma_f32_16x16x32_bf16 {vr(AC)}, {vr(PA0+12)}, {vr(W0+12)}, {vr(AC)}")
a("s_mov_b32 exec_hi, 0")
pack24(16, AC)
pub2(vA2, "v[16:19]", 60, "L_sp")
stamp(12)
diag_flush()
a("s_endpgm")
a("L_tail:")
a("s_mov_b32 s48, 0x04000c0c")
a("s_mov_b32 s49, 0x0706000c")
a("s_cmp_eq_u32 s85, 0")
a("s_cbranch_scc1 L_flw")
sbase(64, 64, SLOW)
sbase(66, 66, SLOW)
a("L_flw:")
a(f"ds_read_b32 v8, v{ZR} offset:{L_FL+4}")
a("s_sub_u32 s100, s100, 1")
a("s_cbranch_scc1 L_flg")
a("s_waitcnt lgkmcnt(0)")
a("v_cmp_eq_u32 vcc, 0, v8")
a("s_cbranch_vccnz L_flw")
a("L_flg:")
a(f"s_mov_b32 s100, {SPIN}")
a("s_cmp_ge_u32 s4, 16")
a("s_cbranch_scc1 L_final")
RG = 32
a("L_rpoll:")
for u in range(4):
    a(f"global_load_dwordx4 {vr(RG+4*u)}, v14, s[64:65] offset:{u*1024} sc1")
a(f"global_load_dwordx4 {vr(RG+16)}, v14, s[66:67] sc1")
a("s_sub_u32 s100, s100, 1")
a("s_cbranch_scc1 L_rgot")
a("s_waitcnt vmcnt(0)")
tagcheck([RG + 3 + 4*n for n in range(5)])
a("s_cbranch_vccnz L_rpoll")
a("L_rgot:")
a("s_waitcnt vmcnt(0)")
stamp(12)
count(21)
for u in range(5): a(f"v_perm_b32 v{RG+4*u+3}, v{RG+4*u}, v{RG+4*u+1}, s48")
for u in range(5): a(f"v_perm_b32 v{RG+4*u+3}, v{RG+4*u+3}, v{RG+4*u+2}, s49")
Y = RG + 16
a(f"v_pk_add_f32 v[{RG}:{RG+1}], v[{RG}:{RG+1}], v[{RG+4}:{RG+5}]")
a(f"v_pk_add_f32 v[{RG+8}:{RG+9}], v[{RG+8}:{RG+9}], v[{RG+12}:{RG+13}]")
a(f"v_permlane32_swap_b32 v{Y}, v{Y+1}")
a(f"v_pk_add_f32 v[{RG+2}:{RG+3}], v[{RG+2}:{RG+3}], v[{RG+6}:{RG+7}]")
a(f"v_pk_add_f32 v[{RG+10}:{RG+11}], v[{RG+10}:{RG+11}], v[{RG+14}:{RG+15}]")
a(f"v_permlane32_swap_b32 v{Y+2}, v{Y+3}")
a(f"v_pk_add_f32 v[{RG}:{RG+1}], v[{RG}:{RG+1}], v[{RG+8}:{RG+9}]")
a(f"v_pk_add_f32 v[{RG+2}:{RG+3}], v[{RG+2}:{RG+3}], v[{RG+10}:{RG+11}]")
a(f"v_add_f32 v{Y}, v{Y}, v{Y+1}")
a(f"v_add_f32 v{Y+2}, v{Y+2}, v{Y+3}")
a(f"v_permlane32_swap_b32 v{RG}, v{RG+1}")
a(f"v_permlane32_swap_b32 v{RG+2}, v{RG+3}")
a(f"v_permlane16_swap_b32 v{Y}, v{Y+2}")
a(f"v_add_f32 v{RG}, v{RG}, v{RG+1}")
a(f"v_add_f32 v{RG+2}, v{RG+2}, v{RG+3}")
a(f"v_add_f32 v{Y}, v{Y}, v{Y+2}")
a(f"v_permlane16_swap_b32 v{RG}, v{RG+2}")
a(f"v_add_f32 v{RG}, v{RG}, v{RG+2}")
dpp("v_add_f32", "v17", f"v{Y}", f"v{Y}", "row_ror:8")
a("s_mov_b32 s32, 0x00ff00ff")
a("s_mov_b32 s33, 0x00ff00ff")
dpp("v_add_f32", "v16", f"v{RG}", f"v{RG}", "row_ror:8")
a("s_mov_b64 exec, s[32:33]")
a(f"global_store_dwordx4 {vA5}, v[16:19], s[68:69] sc1")
stamp(13)
diag_flush()
a("s_endpgm")
a("L_final:")
a("s_waitcnt vmcnt(0)")
a(f"v_lshlrev_b32 v48, 16, v{X0}")
a(f"v_lshlrev_b32 v49, 16, v{X0+1}")
a("L_fpoll:")
a(f"global_load_dwordx4 {vr(32)}, v14, s[46:47] sc1")
a("s_sub_u32 s100, s100, 1")
a("s_cbranch_scc1 L_fgot")
a("s_waitcnt vmcnt(0)")
tagcheck([35])
a("s_cbranch_vccnz L_fpoll")
a("L_fgot:")
a("s_waitcnt vmcnt(0)")
stamp(13)
count(21)
dpp("v_add_f32", "v32", "v32", "v32", "row_ror:8")
dpp("v_add_f32", "v33", "v33", "v33", "row_ror:8")
a("v_mov_b32 v34, v32")
a("v_mov_b32 v35, v33")
a("v_permlane16_swap_b32 v32, v34")
a("v_permlane16_swap_b32 v33, v35")
a("v_pk_add_f32 v[32:33], v[32:33], v[34:35]")
a("v_mov_b32 v34, v32")
a("v_mov_b32 v35, v33")
a("v_permlane32_swap_b32 v32, v34")
a("v_permlane32_swap_b32 v33, v35")
a("v_pk_add_f32 v[32:33], v[32:33], v[34:35]")
bf16_round_pair("v32", "v33", "v32", "v33", "v9")
a("v_add_f32 v33, v33, v49")
bf16_round("v33", "v33")
a("v_mul_f32 v50, 0xbfb8aa3b, v33")
a("v_exp_f32 v50, v50")
a("v_add_f32 v50, 1.0, v50")
a("v_rcp_f32 v50, v50")
a("v_mul_f32 v50, v50, v33")
bf16_round("v50", "v50")
a("v_mul_f32 v32, v32, v50")
bf16_round("v32", "v32")
a("v_add_f32 v32, v32, v48")
a("v_cvt_pk_bf16_f32 v32, v32, v32")
a("s_mov_b64 exec, 0xff")
a(f"global_store_short {vA6}, v32, s[12:13]")
a("s_cmp_lg_u32 s2, 128")
a("s_cbranch_scc1 L_noep")
a("s_mov_b64 exec, 1")
a(f"global_store_dword v{ZR}, v19, s[14:15]")
if AMP:
    a("s_memrealtime s[70:71]")
    a("s_waitcnt lgkmcnt(0)")
    a("s_sub_u32 s72, s70, s58")
    if AMODE:
        a("s_mov_b64 exec, -1")
        sbase(60, 14, WS_DIAG)
        a(f"v_lshlrev_b32 v8, 3, {vLANE}")
        a("L_es:")
        a("global_load_dwordx2 v[40:41], v8, s[60:61] sc1")
        a("s_waitcnt vmcnt(0)")
        a("v_cmp_ne_u32 vcc, s6, v41")
        a("s_cbranch_vccnz L_es")
        a("v_subrev_u32 v40, s58, v40")
        a("v_mov_b32 v42, v40")
        a("v_mov_b32 v43, v40")
        wave_allreduce("v_min_i32", "v42", "v44")
        wave_allreduce("v_max_i32", "v43", "v44")
        a("s_nop 1")
        a("v_readfirstlane_b32 s74, v42")
        a("v_readfirstlane_b32 s75, v43")
        a("s_nop 3")
        if AMODE == 1: a("s_sub_u32 s72, s72, s74")
        if AMODE == 2: a("s_sub_u32 s72, s75, s74")
        if AMODE >= 10:
            a(f"v_readlane_b32 s75, v40, {AMODE - 10}")
            a("s_nop 3")
            a("s_sub_u32 s72, s75, s74")
    a(f"s_mul_i32 s72, s72, {AMP}")
    a("s_min_u32 s72, s72, 100000")
    a("L_amp:")
    a("s_memrealtime s[74:75]")
    a("s_waitcnt lgkmcnt(0)")
    a("s_sub_u32 s73, s74, s70")
    a("s_cmp_lt_u32 s73, s72")
    a("s_cbranch_scc1 L_amp")
a("L_noep:")
if LITE:
    DIAG = 1; stamp(14); diag_flush(); DIAG = 0
stamp(14)
diag_flush()
a("L_end:")
a("s_endpgm")
a(".fill 1024, 4, 0xbf810000")

nv = 176 if (DIAG or LITE) else NVGPR
txt = header
txt += f"; @launch grid=(256,1,1) block=(512,1,1) lds={LDS_BYTES}\n"
txt += '.amdgcn_target "amdgcn-amd-amdhsa--gfx950"\n.text\n'
txt += f".globl {NAME}_kernel\n.p2align 8\n.type {NAME}_kernel,@function\n"
txt += a.text()
txt += f""".section .rodata,"a"
.p2align 6
.amdhsa_kernel {NAME}_kernel
  .amdhsa_next_free_vgpr {nv}
  .amdhsa_next_free_sgpr 102
  .amdhsa_accum_offset {nv}
  .amdhsa_group_segment_fixed_size 0
  .amdhsa_kernarg_size 104
  .amdhsa_user_sgpr_count 2
  .amdhsa_user_sgpr_kernarg_segment_ptr 1
  .amdhsa_system_sgpr_workgroup_id_x 1
.end_amdhsa_kernel
"""
open(OUT, "w").write(txt)
```

```python
import sys
sys.path.insert(0, "work")
from asmlib import Asm
NAME = "recurrent_scan__sliding_block_cached__dense_activation_gelu__decode"
DIAG = "--diag" in sys.argv
OUT = [a for a in sys.argv[1:] if not a.startswith("--")][0]
def opt(name, default):
    for x in sys.argv:
        if x.startswith("--" + name + "="): return int(x.split("=")[1])
    return default
NV1 = 4
GATE = opt("gate", 1)
NWO = opt("nwo", 0)
NW1 = opt("nw1", 4)
NOFAST = opt("nofast", 0)
LITE = opt("lite", 0)
AMP = opt("amp", 0)
WARM = opt("warm", 1)
AMODE = opt("amode", 0)
WF = {0: "sc1", 1: "nt", 2: "sc1 nt"}[opt("wf", 1)]
KPRE = opt("kpre", 4)
W1L = opt("w1l", 1)
QL2 = opt("ql2", 0)
KL = opt("kl", 1)

WS_Q = 0x10000
WS_H = 0x40000
WS_F = 0x70000
WS_R = 0x80000
WS_OA = 0x200000
SLOW = 0x300000
WS_DIAG = 0x800000
HSTR = 16512
L_WQ = 0x0000
L_W1 = 0x4000
L_XN = 0x6000
L_QS = 0x6400
L_MX = 0x6800
L_LS = 0x6810
L_FL = 0x6820
L_OR = 0x7000
LDS_BYTES = L_OR + 8 * 3072
SPIN = 1 << 18

a = Asm()
header = open("cdna_kernels/" + NAME + ".s.ref").read().split("; Override launch")[0]
vLANE, vI16, vQ4 = "v1", "v2", "v3"
vM = ["v4", "v5", "v6", "v7"]
vN = ["v126", "v127"]
K0, V0, QB0, G0, PA0, W0 = 16, 32, 48, 64, 80, 108
X0 = 128
NVGPR = 168
vST, vST2 = "v168", "v169"
AC = 56
ZR = 60
vQA, vHD, vOW, vA1, vA2, vA3, vA4, vA5, vA6, vA7 = [f"v{96+i}" for i in range(10)]
def vr(b, n=4): return f"v[{b}:{b+n-1}]"

def stamp(idx):
    if not DIAG: return
    a(f"s_memrealtime s[98:99]")
    a("s_waitcnt lgkmcnt(0)")
    a(f"v_writelane_b32 {vST}, s98, {idx}")
def count(idx):
    if not DIAG: return
    a(f"s_sub_u32 s101, {SPIN}, s100")
    a(f"v_writelane_b32 {vST}, s101, {idx}")
def diag_flush():
    if not DIAG: return
    a("s_mov_b64 exec, -1")
    a("s_lshl_b32 s7, s2, 3")
    a("s_add_u32 s7, s7, s5")
    a("s_lshl_b32 s7, s7, 8")
    a(f"s_add_u32 s7, s7, {WS_DIAG}")
    a("s_add_u32 s98, s14, s7")
    a("s_addc_u32 s99, s15, 0")
    a(f"v_lshlrev_b32 {vST2}, 2, {vLANE}")
    a(f"global_store_dword {vST2}, {vST}, s[98:99]")
def bf16_round_pair(dlo, dhi, slo, shi, tmp):
    a(f"v_cvt_pk_bf16_f32 {tmp}, {slo}, {shi}")
    a(f"v_lshlrev_b32 {dlo}, 16, {tmp}")
    a(f"v_and_b32 {dhi}, 0xffff0000, {tmp}")
def bf16_round(d, s):
    a(f"v_cvt_pk_bf16_f32 {d}, {s}, {s}")
    a(f"v_and_b32 {d}, 0xffff0000, {d}")
def dpp(op, d, s0, s1, ctrl):
    if op == "v_mov_b32": a(f"v_mov_b32_dpp {d}, {s0} {ctrl} row_mask:0xf bank_mask:0xf")
    else: a(f"{op}_dpp {d}, {s0}, {s1} {ctrl} row_mask:0xf bank_mask:0xf")
def row_allreduce(op, x):
    for r in (8, 4, 2, 1): dpp(op, x, x, x, f"row_ror:{r}")
def wave_allreduce(op, x, t):
    row_allreduce(op, x)
    a(f"v_mov_b32 {t}, {x}")
    a(f"v_permlane16_swap_b32 {x}, {t}")
    a(f"{op} {x}, {x}, {t}")
    a(f"v_mov_b32 {t}, {x}")
    a(f"v_permlane32_swap_b32 {x}, {t}")
    a(f"{op} {x}, {x}, {t}")
def sbase(dst, src, off):
    a(f"s_add_u32 s{dst}, s{src}, {off}")
    a(f"s_addc_u32 s{dst+1}, s{src+1}, 0")
def tagcheck(regs, t0="v12", t1="v13"):
    if len(regs) == 1:
        a(f"v_cmp_ne_u32 vcc, s6, v{regs[0]}"); return
    a(f"v_xor_b32 {t0}, s6, v{regs[0]}")
    i = 1
    while i < len(regs):
        a(f"v_xor_b32 {t1}, s6, v{regs[i]}")
        if i + 1 < len(regs):
            a(f"v_xor_b32 v{regs[i+1]}, s6, v{regs[i+1]}")
            a(f"v_or3_b32 {t0}, {t0}, {t1}, v{regs[i+1]}")
            i += 2
        else:
            a(f"v_or_b32 {t0}, {t0}, {t1}")
            i += 1
    a(f"v_cmp_ne_u32 vcc, 0, {t0}")
def pack24(dst, src):
    for n in range(3):
        a(f"v_perm_b32 v{dst+n}, v{src+n}, v{src+3}, s{88+n}")
def kload(n):
    kh, hf = n >> 1, n & 1
    a(f"global_load_dwordx4 {vr(K0+8*kh+4*hf)}, v13, s[18:19] offset:{kh*2048+hf*128} nt")
def vload(n):
    kh, aa = n >> 1, n & 1
    a(f"global_load_dwordx4 {vr(V0+4*n)}, v15, s[20:21] offset:{kh*2048+aa*256} nt")
def pub2(voff, data, base, tag):
    a("s_cmp_lg_u32 s85, 0")
    a(f"s_cbranch_scc1 {tag}_slow")
    a(f"global_store_dwordx4 {voff}, {data}, s[{base}:{base+1}]")
    a(f"s_branch {tag}_done")
    a(f"{tag}_slow:")
    sbase(base, base, SLOW)
    a(f"global_store_dwordx4 {voff}, {data}, s[{base}:{base+1}] sc1")
    a(f"{tag}_done:")

a(f"{NAME}_kernel:")
if DIAG or LITE: a("s_memrealtime s[100:101]")
if AMP: a("s_memrealtime s[58:59]")
a("s_cmp_ge_u32 s2, 256")
a("s_cbranch_scc1 L_end")
a("s_load_dwordx16 s[16:31], s[0:1], 0")
a("s_load_dwordx4 s[8:11], s[0:1], 64")
a("s_load_dwordx2 s[12:13], s[0:1], 80")
a("s_load_dwordx2 s[14:15], s[0:1], 96")
a(f"v_and_b32 {vLANE}, 63, v0")
a("v_lshrrev_b32 v8, 6, v0")
a(f"v_and_b32 {vI16}, 15, v0")
a(f"v_bfe_u32 {vQ4}, v0, 4, 2")
a("v_readfirstlane_b32 s5, v8")
a("s_lshr_b32 s4, s2, 3")
a(f"v_lshlrev_b32 v14, 4, {vLANE}")
a("s_getpc_b64 s[54:55]")
a("s_and_b32 s56, s4, 7")
a("s_cmp_lg_u32 s56, s5")
a("s_cbranch_scc1 L_nopf")
a("s_lshl_b32 s56, s56, 10")
sbase(54, 54, "s56")
a(f"global_load_dwordx4 {vr(X0+32)}, v14, s[54:55]")
a("L_nopf:")
a("s_and_b32 s3, s2, 7")
if DIAG or LITE: a(f"v_mov_b32 {vST}, 0")
a(f"v_bfe_u32 v8, {vLANE}, 1, 3")
a(f"v_and_b32 v9, 1, {vLANE}")
a("v_lshlrev_b32 v9, 4, v9")
a(f"v_lshl_add_u32 v9, {vQ4}, 5, v9")
a("v_lshl_add_u32 v10, v8, 13, v9")
a("v_xor_b32 v11, 0x8000, v10")
a("v_add_u32 v11, 0x10000, v11")
a("s_lshl_b32 s96, s3, 5")
a("s_add_u32 s96, s96, s4")
a("s_lshr_b32 s32, s96, 2")
a("s_lshl_b32 s32, s32, 7")
a("s_and_b32 s97, s4, 3")
a("s_lshl_b32 s33, s97, 3")
a("s_add_u32 s33, s33, s5")
a("s_lshl_b32 s33, s33, 17")
a("s_add_u32 s32, s32, s33")
a("s_lshl_b32 s39, s5, 11")
a("s_mov_b32 m0, s39")
a("s_add_u32 s39, s39, 1024")
a("v_mul_u32_u24 v124, 3584, v8")
a("v_add_u32 v124, v124, v9")
a("v_xor_b32 v125, 4, v8")
a("v_mul_u32_u24 v125, 3584, v125")
a("v_add_u32 v125, v125, v9")
a("s_and_b32 s36, s5, 3")
a("s_lshr_b32 s35, s96, 3")
a("s_lshl_b32 s35, s35, 7")
a("s_and_b32 s34, s96, 7")
a("s_lshl_b32 s34, s34, 2")
a("s_add_u32 s34, s34, s36")
a(f"s_mul_i32 s34, s34, {16*3584}")
a("s_add_u32 s34, s34, s35")
a("s_lshl_b32 s40, s36, 11")
a(f"s_add_u32 s40, s40, {L_W1}")
a(f"v_lshlrev_b32 v13, 7, {vI16}")
a("v_and_b32 v13, 0x700, v13")
a(f"v_and_b32 v12, 1, {vI16}")
a("v_lshl_add_u32 v13, v12, 6, v13")
a(f"v_lshl_add_u32 v13, {vQ4}, 4, v13")
a("s_lshl_b32 s37, s3, 6")
a("s_add_u32 s37, s37, s5")
a("s_lshl_b32 s37, s37, 5")
a("s_add_u32 s37, s37, s4")
a("s_lshl_b32 s37, s37, 12")
a("s_add_u32 s37, s37, 0x700000")
a("s_cmp_lg_u32 s5, 0")
a("s_waitcnt lgkmcnt(0)")
a("s_cbranch_scc1 L_nox")
a(f"global_load_dwordx4 {vr(W0)}, v14, s[16:17]")
a("L_nox:")
sbase(22, 22, "s32")
a("global_load_lds_dwordx4 v10, s[22:23] nt")
a("s_mov_b32 m0, s39")
sbase(18, 18, "s37")
a("global_load_lds_dwordx4 v11, s[22:23] nt")
a("s_load_dword s6, s[14:15], 0")
def w1blk():
    a("s_cmp_lt_u32 s5, 4")
    a("s_cbranch_scc1 L_now1")
    a("s_cmp_ge_u32 s96, 224")
    a("s_cbranch_scc1 L_now1")
    a("s_mov_b32 m0, s40")
    sbase(28, 28, "s34")
    a("global_load_lds_dwordx4 v124, s[28:29] nt")
    a("s_add_u32 s40, s40, 1024")
    a("s_mov_b32 m0, s40")
    sbase(28, 28, 8*3584)
    a("global_load_lds_dwordx4 v125, s[28:29] nt")
    a("L_now1:")
if not W1L: w1blk()
if DIAG: a("s_memrealtime s[84:85]")
a("s_barrier")
kload(0); kload(1)
if W1L: w1blk()
if QL2:
    a("s_cmp_lg_u32 s5, 1")
    a("s_cbranch_scc1 L_noqw")
    a("s_lshl_b32 s56, s96, 9")
    a(f"s_add_u32 s56, s56, {WS_Q}")
    sbase(54, 14, "s56")
    a("s_mov_b32 exec_hi, 0")
    a(f"global_load_dwordx4 {vr(X0+36)}, v14, s[54:55] sc1")
    a("s_mov_b64 exec, -1")
    a("L_noqw:")
if DIAG or LITE: a(f"v_writelane_b32 {vST}, s100, 0")
a("s_cmp_lg_u32 s5, 0")
a("s_cbranch_scc1 L_noln")
a("v_mov_b32 v8, 0")
for i in range(4): a(f"v_mov_b32 v{W0+4+i}, 0xff800000")
for i in range(4): a(f"v_mov_b32 v{W0+8+i}, 0")
a("s_mov_b64 exec, 1")
a(f"ds_write_b128 v8, {vr(W0+4)} offset:{L_MX}")
a(f"ds_write_b128 v8, {vr(W0+8)} offset:{L_LS}")
a(f"ds_write_b64 v8, v[{W0+8}:{W0+9}] offset:{L_FL}")
a("s_mov_b64 exec, -1")
a("s_waitcnt vmcnt(4)")
if DIAG: a("s_memrealtime s[94:95]")
X = [f"v{V0+i}" for i in range(8)]
for d in range(4):
    a(f"v_lshlrev_b32 {X[2*d]}, 16, v{W0+d}")
    a(f"v_and_b32 {X[2*d+1]}, 0xffff0000, v{W0+d}")
a(f"v_pk_add_f32 v[8:9], v[{V0}:{V0+1}], v[{V0+2}:{V0+3}]")
a(f"v_pk_add_f32 v[10:11], v[{V0+4}:{V0+5}], v[{V0+6}:{V0+7}]")
a("v_pk_add_f32 v[8:9], v[8:9], v[10:11]")
a("v_add_f32 v8, v8, v9")
wave_allreduce("v_add_f32", "v8", "v9")
a("v_mul_f32 v8, 0x3b000000, v8")
D = [f"v{V0+8+i}" for i in range(8)]
for i in range(8): a(f"v_sub_f32 {D[i]}, {X[i]}, v8")
a(f"v_mul_f32 v10, {D[0]}, {D[0]}")
a(f"v_mul_f32 v11, {D[1]}, {D[1]}")
for i in range(2, 8): a(f"v_fmac_f32 v{10+(i&1)}, {D[i]}, {D[i]}")
a("v_add_f32 v10, v10, v11")
bf16_round("v8", "v8")
for r in (8, 4, 2, 1):
    dpp("v_add_f32", "v10", "v10", "v10", f"row_ror:{r}")
    k = {8: 0, 4: 2, 2: 4, 1: 6}[r]
    a(f"v_sub_f32 {D[k]}, {X[k]}, v8")
    a(f"v_sub_f32 {D[k+1]}, {X[k+1]}, v8")
a("v_mov_b32 v9, v10")
bf16_round_pair(D[0], D[1], D[0], D[1], "v11")
a("v_permlane16_swap_b32 v10, v9")
a("v_add_f32 v10, v10, v9")
a("v_mov_b32 v9, v10")
bf16_round_pair(D[2], D[3], D[2], D[3], "v11")
a("v_permlane32_swap_b32 v10, v9")
a("v_add_f32 v10, v10, v9")
a("v_mul_f32 v10, 0x3b000000, v10")
bf16_round("v10", "v10")
a("v_add_f32 v10, 0x3727c5ac, v10")
bf16_round("v10", "v10")
a("v_sqrt_f32 v10, v10")
bf16_round_pair(D[4], D[5], D[4], D[5], "v11")
bf16_round("v10", "v10")
a("v_rcp_f32 v10, v10")
bf16_round_pair(D[6], D[7], D[6], D[7], "v11")
for i in range(8): a(f"v_mul_f32 {D[i]}, {D[i]}, v10")
for d in range(4): a(f"v_cvt_pk_bf16_f32 v{W0+d}, {D[2*d]}, {D[2*d+1]}")
a(f"ds_write_b128 v14, {vr(W0)} offset:{L_XN}")
a("L_noln:")
sbase(20, 20, "s37")
a("s_getreg_b32 s86, hwreg(HW_REG_XCC_ID, 0, 4)")
if NOFAST: a("s_add_u32 s86, s86, s2")
a(f"v_lshlrev_b32 v15, 9, {vQ4}")
a(f"v_lshl_add_u32 v15, {vI16}, 4, v15")
a("v_cmp_eq_u32 vcc, 1, v12")
a("v_mov_b32 v9, 0xffff")
a("v_mov_b32 v10, 0xffff0000")
a("v_cndmask_b32 v9, v9, v10, vcc")
a("s_mov_b64 s[92:93], vcc")
a(f"v_bfe_u32 v8, {vI16}, 1, 2")
for d in range(4):
    a(f"v_cmp_eq_u32 vcc, {d}, v8")
    a(f"v_cndmask_b32 {vM[d]}, 0, v9, vcc")
a(f"v_or_b32 {vN[0]}, {vM[0]}, {vM[2]}")
a(f"v_or_b32 {vN[1]}, {vM[1]}, {vM[3]}")
for p in (44, 46, 62, 64, 66, 68): a(f"s_mov_b64 s[{p}:{p+1}], s[14:15]")
for r in range(99, 106): a(f"v_mov_b32 v{r}, 0")
for i in range(4): a(f"v_mov_b32 v{ZR+i}, 0")
a("s_mov_b32 s88, 0x07060503")
a("s_mov_b32 s89, 0x07060502")
a("s_mov_b32 s90, 0x07060501")
a("s_mov_b32 s80, 0x3db504f3")
a("s_mov_b32 s81, 0x3fb8aa3b")
a("s_mov_b32 s82, 0x11111111")
a("s_mov_b32 s83, 0x11111111")
a(f"v_lshrrev_b32 v8, 2, {vI16}")
a(f"v_lshlrev_b32 {vHD}, 2, v8")
a("v_lshlrev_b32 v8, 8, v8")
a(f"v_lshl_add_u32 v8, {vQ4}, 4, v8")
a(f"v_lshl_add_u32 {vQA}, v12, 6, v8")
a("s_mul_i32 s32, s5, 3072")
a(f"v_mul_u32_u24 {vOW}, 768, {vQ4}")
a(f"v_lshl_add_u32 {vOW}, {vI16}, 4, {vOW}")
a(f"v_add_u32 {vOW}, s32, {vOW}")
a("s_lshl_b32 s32, s36, 8")
a(f"v_lshlrev_b32 v8, 10, {vQ4}")
a(f"v_lshl_add_u32 v8, {vI16}, 3, v8")
a("v_add_u32 v8, s32, v8")
a(f"v_and_b32 v9, 1, {vQ4}")
a("v_lshlrev_b32 v9, 7, v9")
a("v_add_u32 v10, v8, v9")
a("v_xor_b32 v9, 128, v9")
a("v_add_u32 v11, v8, v9")
a(f"v_lshlrev_b32 v124, 4, {vQ4}")
a(f"v_lshlrev_b32 v125, 3, {vLANE}")
a(f"s_mul_i32 s41, s3, {0x14000}")
a(f"s_add_u32 s41, s41, {WS_R}")
a(f"v_and_b32 v8, 3, {vI16}")
a("v_lshlrev_b32 v8, 5, v8")
a(f"v_lshl_add_u32 v8, {vQ4}, 4, v8")
a(f"v_lshrrev_b32 v9, 2, {vI16}")
def partial(nsteps, lbase, XA):
    for t in range(nsteps):
        a(f"ds_read_b128 {vr(XA+4*t)}, v124 offset:{L_XN + t*64}")
        b = PA0 + 4*t
        a(f"ds_read_b64_tr_b16 v[{b}:{b+1}], v10 offset:{lbase + t*4096}")
        a(f"ds_read_b64_tr_b16 v[{b+2}:{b+3}], v11 offset:{lbase + t*4096}")
    if nsteps == 4: a(f"v_mov_b32 v{QB0+2}, s86")
    else: a(f"v_mov_b32 v{QB0+1}, s6")
    a(f"v_mov_b32 v{QB0+3}, s6")
    for t in range(nsteps):
        a(f"s_waitcnt lgkmcnt({3*(nsteps-1-t)})")
        c = "0" if t == 0 else vr(AC)
        a(f"v_mfma_f32_16x16x32_bf16 {vr(AC)}, {vr(XA+4*t)}, {vr(PA0+4*t)}, {c}")
def partial_fin(k, dual=0):
    a(f"v_mov_b32 v{QB0}, v{AC}")
    dpp("v_mov_b32", f"v{QB0+k}", f"v{AC}", None, "quad_perm:[1,0,3,2]")
    a("s_mov_b64 exec, 0x5555")
    if dual:
        if not NOFAST: a(f"global_store_dwordx4 v125, {vr(QB0)}, s[42:43]")
        a(f"global_store_dwordx4 v125, {vr(QB0)}, s[52:53] sc1")
    else:
        a(f"global_store_dwordx4 v125, {vr(QB0)}, s[42:43] sc1")
    a("s_mov_b64 exec, -1")
def tagcalc():
    a("s_waitcnt lgkmcnt(0)")
    if DIAG:
        a(f"v_writelane_b32 {vST}, s94, 15")
        a(f"v_writelane_b32 {vST}, s84, 23")
    stamp(16)
    a("s_lshr_b32 s6, s6, 1")
    a("s_mul_i32 s6, s6, 0x5DEECE6D")
    a("s_add_u32 s6, s6, 0xB")
    a("s_lshl_b32 s6, s6, 1")
    a("s_or_b32 s6, s6, 1")
HG = X0 + 28
B1R = X0 + 36
def hgather():
    a(f"global_load_dwordx4 {vr(HG)}, v{W0}, s[44:45] sc1")
    a(f"global_load_dwordx4 {vr(HG+4)}, v{W0}, s[44:45] offset:16 sc1")
a("s_cmp_ge_u32 s5, 4")
a("s_cbranch_scc1 L_B0b")
a(f"v_lshl_add_u32 {vA2}, v9, 12, v8")
a("s_and_b32 s32, s4, 28")
a("s_add_u32 s32, s32, s5")
a("s_lshl_b32 s33, s97, 14")
a("s_lshl_b32 s34, s32, 7")
a("s_add_u32 s33, s33, s34")
a("s_add_u32 s33, s33, s41")
sbase(60, 14, "s33")
for n in range(2, KPRE): kload(n)
a("s_lshl_b32 s33, s3, 5")
a("s_add_u32 s91, s32, s33")
a("s_lshl_b32 s32, s91, 14")
a("s_lshl_b32 s33, s97, 8")
a("s_add_u32 s32, s32, s33")
sbase(24, 24, "s32")
a("s_lshl_b32 s32, s91, 12")
a(f"s_add_u32 s32, s32, {WS_OA}")
sbase(62, 14, "s32")
a(f"v_lshlrev_b32 {vA3}, 12, {vQ4}")
a(f"v_lshl_add_u32 {vA3}, {vI16}, 4, {vA3}")
a(f"v_lshrrev_b32 v8, 1, {vI16}")
a("v_lshlrev_b32 v8, 7, v8")
a(f"v_lshl_add_u32 v8, {vQ4}, 5, v8")
a(f"v_lshl_add_u32 {vA1}, v12, 4, v8")
a("s_lshl_b32 s32, s97, 8")
a("v_add_u32 v124, s32, v124")
a("s_lshl_b32 s32, s3, 14")
a("s_lshl_b32 s33, s97, 12")
a("s_add_u32 s33, s32, s33")
a("s_lshr_b32 s34, s4, 2")
a("s_lshl_b32 s34, s34, 2")
a("s_add_u32 s34, s34, s5")
a("s_lshl_b32 s34, s34, 7")
a("s_add_u32 s33, s33, s34")
a(f"s_add_u32 s33, s33, {WS_Q}")
sbase(42, 14, "s33")
a("s_lshl_b32 s33, s5, 10")
a("s_add_u32 s32, s32, s33")
a(f"s_add_u32 s32, s32, {WS_Q + 4096}")
sbase(44, 14, "s32")
sbase(46, 44, 8192)
a("s_lshl_b32 s32, s5, 8")
a(f"v_lshl_add_u32 {vA4}, {vLANE}, 2, s32")
tagcalc()
if QL2:
    a("s_cmp_eq_u32 s5, 1")
    a("s_cbranch_scc1 L_aw1")
a(f"s_waitcnt vmcnt({KPRE})")
if QL2:
    a("L_aw1:")
    a(f"s_waitcnt vmcnt({KPRE+1})")
    sbase(52, 42, SLOW)
stamp(2)
a("s_barrier")
partial(4, L_WQ, G0)
partial_fin(1, QL2)
stamp(4)
a("s_barrier")
for n in range(KPRE, 4): kload(n)
def woload(rg): a(f"global_load_dwordx4 {vr(W0+4*rg)}, {vA3}, s[24:25] offset:{rg*1024} nt")
for n in range(NV1): vload(n)
for n in range(NWO): woload(n)
if GATE >= 0: a(f"s_waitcnt vmcnt({4 - GATE + NWO})")
stamp(1)
a("s_barrier")
def qgather():
    a(f"global_load_dwordx4 {vr(G0)}, v14, s[44:45] offset:-4096 sc1")
    a(f"global_load_dwordx4 {vr(G0+4)}, v14, s[44:45] sc1")
    a(f"global_load_dwordx4 {vr(G0+8)}, v14, s[46:47] offset:-4096 sc1")
    a(f"global_load_dwordx4 {vr(G0+12)}, v14, s[46:47] sc1")
qgather()
stamp(22)
a("s_barrier")
for n in range(NWO, 4): woload(n)
stamp(5)
a(f"s_mov_b32 s100, {SPIN}")
a("s_mov_b32 s87, 1")
if QL2: a(f"s_mov_b32 s57, {(-SLOW) & 0xffffffff}")
a(f"s_waitcnt vmcnt({4 - NWO})")
stamp(19)
a("s_branch L_qchk")
a("L_qpoll:")
if QL2:
    a(f"s_xor_b32 s57, s57, {SLOW ^ ((-SLOW) & 0xffffffff)}")
    a("s_ashr_i32 s56, s57, 31")
    a("s_add_u32 s44, s44, s57")
    a("s_addc_u32 s45, s45, s56")
    a("s_add_u32 s46, s46, s57")
    a("s_addc_u32 s47, s47, s56")
qgather()
a("s_waitcnt vmcnt(0)")
a("L_qchk:")
tagcheck([G0 + 3 + 4*n for n in range(4)])
a("s_sub_u32 s100, s100, 1")
a("s_cbranch_scc1 L_qgot")
a("s_cbranch_vccnz L_qpoll")
a("L_qgot:")
a(f"v_pk_add_f32 v[{G0}:{G0+1}], v[{G0}:{G0+1}], v[{G0+4}:{G0+5}]")
a(f"v_pk_add_f32 v[{G0+8}:{G0+9}], v[{G0+8}:{G0+9}], v[{G0+12}:{G0+13}]")
a(f"v_xor_b32 v12, s86, v{G0+2}")
a(f"v_pk_add_f32 v[{G0}:{G0+1}], v[{G0}:{G0+1}], v[{G0+8}:{G0+9}]")
a(f"v_xor_b32 v13, s86, v{G0+6}")
a(f"v_xor_b32 v{G0+10}, s86, v{G0+10}")
a(f"v_cvt_pk_bf16_f32 v8, v{G0}, v{G0+1}")
a(f"v_xor_b32 v{G0+14}, s86, v{G0+14}")
a(f"ds_write_b32 {vA4}, v8 offset:{L_QS}")
a(f"v_or3_b32 v12, v12, v13, v{G0+10}")
a(f"v_or_b32 v12, v12, v{G0+14}")
a("v_cmp_ne_u32 vcc, 0, v12")
count(20)
a("s_cbranch_vccz L_B1")
a("v_mov_b32 v13, 1")
a(f"ds_write_b32 v{ZR}, v13 offset:{L_FL}")
a("s_branch L_B1")
a("L_B0b:")
a(f"v_lshrrev_b32 v12, 3, {vLANE}")
a("v_lshlrev_b32 v12, 12, v12")
a(f"v_and_b32 {vA2}, 7, {vLANE}")
a(f"v_lshl_add_u32 {vA2}, {vA2}, 4, v12")
a("s_lshl_b32 s32, s3, 17")
a("s_lshl_b32 s33, s36, 15")
a("s_add_u32 s32, s32, s33")
a("s_lshl_b32 s33, s4, 7")
a("s_add_u32 s32, s32, s33")
a(f"s_add_u32 s32, s32, {WS_OA}")
sbase(60, 14, "s32")
a(f"v_lshl_add_u32 {vA4}, v9, 10, v8")
a("s_lshl_b32 s32, s97, 12")
a("s_lshr_b32 s33, s4, 2")
a("s_lshl_b32 s33, s33, 7")
a("s_add_u32 s32, s32, s33")
a("s_add_u32 s32, s32, s41")
a("s_add_u32 s32, s32, 0x10000")
sbase(62, 14, "s32")
for n in range(2, KPRE): kload(n)
a("s_and_b32 s33, s96, 7")
a("s_lshl_b32 s32, s33, 7")
a("v_add_u32 v124, s32, v124")
a(f"s_mul_i32 s32, s33, {HSTR}")
a("s_lshr_b32 s33, s96, 3")
a("s_lshl_b32 s33, s33, 9")
a("s_add_u32 s32, s32, s33")
a("s_lshl_b32 s33, s36, 7")
a("s_add_u32 s32, s32, s33")
a(f"s_add_u32 s32, s32, {WS_H}")
sbase(42, 14, "s32")
a("s_lshr_b32 s7, s96, 2")
a("s_mul_i32 s7, s7, 28")
a("s_lshl_b32 s32, s7, 3")
a(f"s_add_u32 s32, s32, {WS_H}")
sbase(44, 14, "s32")
a("s_lshl_b32 s32, s7, 10")
a("s_lshl_b32 s33, s97, 8")
a("s_add_u32 s32, s32, s33")
sbase(8, 8, "s32")
a("s_lshl_b32 s32, s7, 1")
sbase(30, 30, "s32")
a(f"v_and_b32 v{W0}, 7, {vI16}")
a(f"v_mul_u32_u24 v{W0}, {HSTR}, v{W0}")
a(f"v_mul_u32_u24 v{W0+1}, 7, {vQ4}")
a(f"v_lshrrev_b32 v{W0+3}, 3, {vI16}")
a(f"v_lshl_add_u32 v{W0+3}, v{W0+3}, 2, v{W0+1}")
a(f"v_lshl_add_u32 v{W0}, v{W0+3}, 3, v{W0}")
a(f"v_lshlrev_b32 v{W0+3}, 1, v{W0+3}")
a(f"v_min_u32 v{W0+4}, 48, v{W0+3}")
a(f"v_lshlrev_b32 v{W0+1}, 10, v{W0+1}")
a(f"v_lshl_add_u32 v{W0+1}, {vI16}, 4, v{W0+1}")
a(f"v_add_u32 v{W0+2}, 4096, v{W0+1}")
a("s_mul_i32 s33, s36, 768")
a(f"v_bfe_u32 v9, {vLANE}, 1, 1")
a("v_mul_u32_u24 v9, 384, v9")
a(f"v_lshrrev_b32 v8, 2, {vLANE}")
a("v_lshl_add_u32 v9, v8, 4, v9")
a(f"v_and_b32 v8, 1, {vLANE}")
a("v_lshl_add_u32 v9, v8, 3, v9")
a(f"v_add_u32 {vA1}, s33, v9")
a("s_lshl_b32 s33, s36, 2")
a(f"v_mov_b32 {vA3}, s33")
a("s_and_b32 s32, s4, 15")
a("s_lshl_b32 s33, s32, 12")
a("s_add_u32 s33, s33, s41")
sbase(64, 14, "s33")
a("s_lshl_b32 s33, s32, 10")
a("s_add_u32 s33, s33, s41")
a("s_add_u32 s33, s33, 0x10000")
sbase(66, 14, "s33")
a("s_lshl_b32 s33, s32, 12")
a("s_lshl_b32 s34, s3, 7")
a("s_add_u32 s33, s33, s34")
a(f"s_add_u32 s33, s33, {WS_F}")
sbase(68, 14, "s33")
a(f"v_and_b32 v8, 1, {vQ4}")
a("v_lshlrev_b32 v8, 1, v8")
a(f"v_lshrrev_b32 v9, 1, {vQ4}")
a("v_add_u32 v8, v8, v9")
a(f"v_and_b32 v9, 1, {vI16}")
a("v_lshl_add_u32 v8, v9, 2, v8")
a(f"v_bfe_u32 v9, {vI16}, 1, 2")
a("v_lshlrev_b32 v9, 10, v9")
a(f"v_lshl_add_u32 {vA5}, v8, 4, v9")
a("s_and_b32 s32, s4, 7")
a("s_lshl_b32 s33, s3, 3")
a("s_add_u32 s32, s32, s33")
a("s_lshl_b32 s33, s32, 10")
a(f"s_add_u32 s33, s33, {WS_F}")
sbase(46, 14, "s33")
a("s_lshl_b32 s33, s32, 4")
sbase(16, 16, "s33")
sbase(10, 10, "s33")
sbase(12, 12, "s33")
a(f"v_and_b32 {vA6}, 7, {vLANE}")
a(f"v_lshlrev_b32 {vA6}, 1, {vA6}")
tagcalc()
if W1L:
    a("s_cmp_lt_u32 s96, 224")
    a("s_cbranch_scc1 L_bw1")
a(f"s_waitcnt vmcnt({KPRE})")
if W1L:
    a("L_bw1:")
    a(f"s_waitcnt vmcnt({KPRE+2})")
stamp(2)
a("s_barrier")
if not W1L:
    partial(2, L_W1, G0)
    partial_fin(2)
stamp(4)
a("s_barrier")
for n in range(KPRE, 4): kload(n)
for n in range(NV1): vload(n)
if W1L: a(f"s_waitcnt vmcnt({2 + NV1})")
stamp(1)
a("s_barrier")
if W1L:
    partial(2, L_W1, G0)
    partial_fin(2)
a("s_barrier")
a("s_mov_b32 s87, 0")
a("s_cmp_lg_u32 s5, 4")
a("s_cbranch_scc1 L_now2")
for rg in range(7):
    if rg < 4: a(f"global_load_dwordx4 {vr(X0+4*rg)}, v{W0+1}, s[8:9] offset:{rg*1024} nt")
    else: a(f"global_load_dwordx4 {vr(X0+4*rg)}, v{W0+2}, s[8:9] offset:{(rg-4)*1024} nt")
for n in range(3):
    a(f"global_load_ushort v{B1R+n}, v{W0+3}, s[30:31] offset:{2*n}")
a(f"global_load_ushort v{B1R+3}, v{W0+4}, s[30:31] offset:6")
a("s_mov_b32 s87, 2")
a("s_waitcnt vmcnt(12)")
a("s_branch L_B1")
a("L_now2:")
a("s_cmp_lg_u32 s5, 5")
a("s_cbranch_scc1 L_nof")
a("s_lshr_b32 s32, s4, 3")
a("s_cmp_lt_u32 s32, 2")
a("s_cselect_b32 s87, 3, 0")
a("s_cmp_lg_u32 s32, 2")
a("s_cbranch_scc1 L_nof")
a(f"global_load_ushort v{X0}, {vA6}, s[16:17]")
a(f"global_load_ushort v{X0+1}, {vA6}, s[10:11]")
a(f"global_load_dwordx4 {vr(X0+4)}, v14, s[46:47] {WF}")
a("s_waitcnt vmcnt(4)")
a("s_branch L_B1")
a("L_nof:")
a("s_waitcnt vmcnt(1)")
a("L_B1:")
a("s_waitcnt lgkmcnt(0)")
stamp(6)
a("s_barrier")
for hf in range(2):
    a(f"ds_read_b128 {vr(QB0+4*hf)}, {vQA} offset:{L_QS + hf*128}")
a(f"ds_read_b32 v11, v{ZR} offset:{L_FL}")
DD = lambda kh: G0 + 4*kh
for hf in range(2):
    a(f"s_waitcnt lgkmcnt({2-hf})")
    for kh in range(2):
        c = "0" if hf == 0 else vr(DD(kh))
        a(f"v_mfma_f32_16x16x32_bf16 {vr(DD(kh))}, {vr(K0+8*kh+4*hf)}, {vr(QB0+4*hf)}, {c}")
a("s_cmp_eq_u32 s87, 0")
a("s_cbranch_scc1 L_lated")
a("s_cmp_eq_u32 s87, 1")
a("s_cbranch_scc1 L_late1")
a("s_cmp_eq_u32 s87, 2")
a("s_cbranch_scc1 L_late2")
for u in range(4):
    a(f"global_load_dwordx4 {vr(X0+4*u)}, v14, s[64:65] offset:{u*1024} {WF}")
a(f"global_load_dwordx4 {vr(X0+16)}, v14, s[66:67] {WF}")
a("s_branch L_lated")
a("L_late2:")
hgather()
a("s_branch L_lated")
a("L_late1:")
for u in range(4):
    a(f"global_load_dwordx4 {vr(X0+4*u)}, {vA1}, s[62:63] offset:{u*1024} {WF}")
a("L_lated:")
a("s_waitcnt lgkmcnt(0)")
a("v_readfirstlane_b32 s85, v11")
a("s_nop 3")
a(f"s_mov_b32 s100, {SPIN}")
S = [f"v{G0+8+n}" for n in range(4)]
for kh in range(2):
    for aa in range(2):
        d = DD(kh) + 2*aa
        a(f"v_cndmask_b32 {S[kh*2+aa]}, v{d}, v{d+1}, s[92:93]")
for n in range(4): dpp("v_add_f32", S[n], S[n], S[n], "quad_perm:[1,0,3,2]")
a(f"v_cvt_pk_bf16_f32 v9, {S[0]}, {S[1]}")
a(f"v_cvt_pk_bf16_f32 v10, {S[2]}, {S[3]}")
a(f"v_lshlrev_b32 {S[0]}, 16, v9")
a(f"v_and_b32 {S[1]}, 0xffff0000, v9")
a(f"v_lshlrev_b32 {S[2]}, 16, v10")
a(f"v_and_b32 {S[3]}, 0xffff0000, v10")
for n in range(4): a(f"v_mul_f32 {S[n]}, s80, {S[n]}")
a(f"v_cvt_pk_bf16_f32 v9, {S[0]}, {S[1]}")
a(f"v_cvt_pk_bf16_f32 v10, {S[2]}, {S[3]}")
a(f"v_lshlrev_b32 {S[0]}, 16, v9")
a(f"v_and_b32 {S[1]}, 0xffff0000, v9")
a(f"v_lshlrev_b32 {S[2]}, 16, v10")
a(f"v_and_b32 {S[3]}, 0xffff0000, v10")
a(f"v_max3_f32 v10, {S[0]}, {S[1]}, {S[2]}")
a(f"v_max_f32 v10, v10, {S[3]}")
a("s_mov_b64 exec, s[82:83]")
a(f"ds_max_f32 {vHD}, v10 offset:{L_MX}")
a("s_mov_b64 exec, -1")
a("s_waitcnt lgkmcnt(0)")
stamp(7)
a("s_barrier")
a(f"ds_read_b32 v10, {vHD} offset:{L_MX}")
a("s_waitcnt lgkmcnt(0)")
a("v_mul_f32 v10, s81, v10")
for n in range(4): a(f"v_fma_f32 {S[n]}, {S[n]}, s81, -v10")
for n in range(4): a(f"v_exp_f32 {S[n]}, {S[n]}")
ACC = [QB0, QB0 + 4]
for n in range(4):
    a(f"v_cvt_pk_bf16_f32 v{G0+12+n}, {S[n]}, {S[n]}")
for n in range(4):
    for d in range(2): a(f"v_and_b32 v{PA0+2*n+d}, v{G0+12+n}, {vN[d]}")
def pvm(m):
    for hl in range(2):
        c = "0" if m == 0 else vr(ACC[hl])
        a(f"v_mfma_f32_16x16x16_bf16 {vr(ACC[hl])}, {vr(PA0+2*m, 2)}, {vr(V0+4*m+2*hl, 2)}, {c}")
for m in range(NV1): pvm(m)
a(f"v_add_f32 v12, {S[0]}, {S[1]}")
a(f"v_add_f32 v13, {S[2]}, {S[3]}")
a("v_add_f32 v10, v12, v13")
a("s_mov_b64 exec, s[82:83]")
a(f"ds_add_f32 {vHD}, v10 offset:{L_LS}")
a("s_mov_b64 exec, -1")
a("v_mov_b32 v19, s6")
stamp(8)
if NV1 < 4:
    for code, wv in ((2, 2), (1, 4), (3, 5)):
        a(f"s_cmp_eq_u32 s87, {code}")
        a(f"s_cbranch_scc1 L_vw{wv}")
    for wv in (0, 2, 4, 5):
        if wv: a(f"L_vw{wv}:")
        a(f"s_waitcnt vmcnt({wv})")
    stamp(18)
    for m in range(NV1, 4): pvm(m)
a("s_cmp_lt_u32 s5, 4")
for hl in range(2):
    a(f"ds_write_b128 {vOW}, {vr(ACC[hl])} offset:{L_OR + hl*384}")
a("s_waitcnt lgkmcnt(0)")
stamp(9)
a("s_barrier")
a("s_cbranch_scc1 L_wo")
a(f"ds_read_b32 v11, {vA3} offset:{L_LS}")
a(f"ds_read_b32 v12, {vA3} offset:{L_MX}")
for w in range(8):
    a(f"ds_read_b64 v[{32+2*w}:{33+2*w}], {vA1} offset:{L_OR + w*3072}")
a("s_waitcnt lgkmcnt(8)")
a("v_log_f32 v13, v11")
a("v_rcp_f32 v11, v11")
a("v_fma_f32 v18, v12, s81, v13")
a("s_waitcnt lgkmcnt(4)")
a("v_pk_add_f32 v[32:33], v[32:33], v[34:35]")
a("v_pk_add_f32 v[36:37], v[36:37], v[38:39]")
a("s_waitcnt lgkmcnt(0)")
a("v_pk_add_f32 v[40:41], v[40:41], v[42:43]")
a("v_pk_add_f32 v[44:45], v[44:45], v[46:47]")
a("v_pk_add_f32 v[32:33], v[32:33], v[36:37]")
a("v_pk_add_f32 v[40:41], v[40:41], v[44:45]")
a("v_pk_add_f32 v[32:33], v[32:33], v[40:41]")
a("v_mul_f32 v16, v32, v11")
a("v_mul_f32 v17, v33, v11")
pub2(vA2, "v[16:19]", 60, "L_op")
stamp(10)
a("s_cmp_eq_u32 s5, 4")
a("s_cbranch_scc1 L_ffn2")
a("s_cmp_lg_u32 s5, 5")
a("s_cbranch_scc1 L_done")
a("s_cmp_lt_u32 s4, 24")
a("s_cbranch_scc1 L_tail")
a("L_done:")
if AMODE:
    a("s_cmp_lg_u32 s5, 7")
    a("s_cbranch_scc1 L_noes")
    a("s_lshl_b32 s32, s2, 3")
    a(f"s_add_u32 s32, s32, {WS_DIAG}")
    sbase(60, 14, "s32")
    a("v_mov_b32 v16, s58")
    a("v_mov_b32 v17, s6")
    a("s_mov_b64 exec, 1")
    a(f"global_store_dwordx2 v{ZR}, v[16:17], s[60:61] sc1")
    a("L_noes:")
if LITE:
    DIAG = 1; diag_flush(); DIAG = 0
diag_flush()
a("s_endpgm")
a("L_ffn2:")
a(f"v_cmp_gt_u32 s[40:41], 8, {vI16}")
a("s_waitcnt vmcnt(1)")
a("s_branch L_hchk")
a("L_hpoll:")
hgather()
a("s_waitcnt vmcnt(0)")
a("L_hchk:")
a("v_mov_b32 v14, s6")
a(f"v_cndmask_b32 v14, v14, v{HG+7}, s[40:41]")
tagcheck([HG+1, HG+3, HG+5, 14])
a("s_sub_u32 s100, s100, 1")
a("s_cbranch_scc1 L_hgot")
a("s_cbranch_vccnz L_hpoll")
a("L_hgot:")
H = [f"v{HG+2*n}" for n in range(4)]
for ctrl in ("quad_perm:[1,0,3,2]", "quad_perm:[2,3,0,1]", "row_half_mirror"):
    for n in range(4): dpp("v_add_f32", H[n], H[n], H[n], ctrl)
a("v_mov_b32 v30, 0x3d372713")
T4 = [f"v{32+n}" for n in range(4)]
for n in (0, 2): bf16_round_pair(H[n], H[n+1], H[n], H[n+1], "v9")
for n in range(4): a(f"v_lshlrev_b32 v{B1R+n}, 16, v{B1R+n}")
for n in range(4): a(f"v_add_f32 {H[n]}, {H[n]}, v{B1R+n}")
for n in (0, 2): bf16_round_pair(H[n], H[n+1], H[n], H[n+1], "v9")
for n in range(4): a(f"v_mul_f32 {T4[n]}, {H[n]}, {H[n]}")
for n in range(4): a(f"v_fma_f32 {T4[n]}, {T4[n]}, v30, 1.0")
for n in range(4): a(f"v_mul_f32 {T4[n]}, {T4[n]}, {H[n]}")
for n in range(4): a(f"v_mul_f32 {T4[n]}, 0xc0135761, {T4[n]}")
for n in range(4): a(f"v_exp_f32 {T4[n]}, {T4[n]}")
for n in range(4): a(f"v_add_f32 {T4[n]}, 1.0, {T4[n]}")
for n in range(4): a(f"v_rcp_f32 {T4[n]}, {T4[n]}")
for n in range(4): a(f"v_mul_f32 {H[n]}, {H[n]}, {T4[n]}")
for n in range(4): a(f"v_cvt_pk_bf16_f32 v{20+n}, {H[n]}, {H[n]}")
for n in range(3): dpp("v_mov_b32", f"v{24+n}", f"v{20+n}", None, "row_ror:8")
for rg in range(7):
    for d in range(4): a(f"v_and_b32 v{G0+4*rg+d}, v{20+rg}, {vM[d]}")
for rg in range(7):
    c = "0" if rg == 0 else vr(AC)
    a(f"v_mfma_f32_16x16x32_bf16 {vr(AC)}, {vr(G0+4*rg)}, {vr(X0+4*rg)}, {c}")
a("s_mov_b32 exec_hi, 0")
pack24(16, AC)
pub2(vA4, "v[16:19]", 62, "L_yp")
stamp(11)
diag_flush()
a("s_endpgm")
a("L_wo:")
a("s_cmp_eq_u32 s85, 0")
a("s_cbranch_scc1 L_opoll")
sbase(62, 62, SLOW)
OG0 = 32
a("L_opoll:")
for u in range(4):
    a(f"global_load_dwordx4 {vr(OG0+4*u)}, {vA1}, s[62:63] offset:{u*1024} sc1")
a("s_sub_u32 s100, s100, 1")
a("s_cbranch_scc1 L_ogot")
a("s_waitcnt vmcnt(0)")
tagcheck([OG0 + 3 + 4*n for n in range(4)])
a("s_cbranch_vccnz L_opoll")
a("L_ogot:")
a("s_waitcnt vmcnt(0)")
a(f"v_max3_f32 v12, v{OG0+2}, v{OG0+6}, v{OG0+10}")
a(f"ds_write_b32 v{ZR}, v19 offset:{L_FL+4}")
a(f"v_max_f32 v12, v12, v{OG0+14}")
stamp(11)
count(21)
for r in (8, 4, 2): dpp("v_max_f32", "v12", "v12", "v12", f"row_ror:{r}")
for u in range(4): a(f"v_sub_f32 v{OG0+4*u+2}, v{OG0+4*u+2}, v12")
for u in range(4): a(f"v_exp_f32 v{OG0+4*u+2}, v{OG0+4*u+2}")
a(f"v_mul_f32 v12, v{OG0+2}, v{OG0}")
a(f"v_mul_f32 v13, v{OG0+2}, v{OG0+1}")
a(f"v_add_f32 v14, v{OG0+2}, v{OG0+6}")
a(f"v_add_f32 v9, v{OG0+10}, v{OG0+14}")
for u in range(1, 4):
    a(f"v_fmac_f32 v12, v{OG0+4*u+2}, v{OG0+4*u}")
    a(f"v_fmac_f32 v13, v{OG0+4*u+2}, v{OG0+4*u+1}")
    if u == 1: a("v_add_f32 v14, v14, v9")
for r in (8, 4, 2):
    for x in ("v14", "v12", "v13"): dpp("v_add_f32", x, x, x, f"row_ror:{r}")
a("v_rcp_f32 v14, v14")
a("v_mul_f32 v12, v12, v14")
a("v_mul_f32 v13, v13, v14")
a("v_cvt_pk_bf16_f32 v12, v12, v12")
a("v_cvt_pk_bf16_f32 v13, v13, v13")
srcs = [("v12", "[0,0,2,2]"), ("v13", "[0,0,2,2]"), ("v12", "[1,1,3,3]"), ("v13", "[1,1,3,3]")]
for rg in range(4):
    for d in range(4):
        dpp("v_and_b32", f"v{PA0+4*rg+d}", srcs[rg][0], vM[d], f"quad_perm:{srcs[rg][1]}")
    if rg >= 1:
        c = "0" if rg == 1 else vr(AC)
        a(f"v_mfma_f32_16x16x32_bf16 {vr(AC)}, {vr(PA0+4*(rg-1))}, {vr(W0+4*(rg-1))}, {c}")
a(f"v_mfma_f32_16x16x32_bf16 {vr(AC)}, {vr(PA0+12)}, {vr(W0+12)}, {vr(AC)}")
a("s_mov_b32 exec_hi, 0")
pack24(16, AC)
pub2(vA2, "v[16:19]", 60, "L_sp")
stamp(12)
diag_flush()
a("s_endpgm")
a("L_tail:")
a("s_mov_b32 s48, 0x04000c0c")
a("s_mov_b32 s49, 0x0706000c")
a("s_cmp_eq_u32 s85, 0")
a("s_cbranch_scc1 L_flw")
sbase(64, 64, SLOW)
sbase(66, 66, SLOW)
a("L_flw:")
a(f"ds_read_b32 v8, v{ZR} offset:{L_FL+4}")
a("s_sub_u32 s100, s100, 1")
a("s_cbranch_scc1 L_flg")
a("s_waitcnt lgkmcnt(0)")
a("v_cmp_eq_u32 vcc, 0, v8")
a("s_cbranch_vccnz L_flw")
a("L_flg:")
a(f"s_mov_b32 s100, {SPIN}")
a("s_cmp_ge_u32 s4, 16")
a("s_cbranch_scc1 L_final")
RG = 32
a("L_rpoll:")
for u in range(4):
    a(f"global_load_dwordx4 {vr(RG+4*u)}, v14, s[64:65] offset:{u*1024} sc1")
a(f"global_load_dwordx4 {vr(RG+16)}, v14, s[66:67] sc1")
a("s_sub_u32 s100, s100, 1")
a("s_cbranch_scc1 L_rgot")
a("s_waitcnt vmcnt(0)")
tagcheck([RG + 3 + 4*n for n in range(5)])
a("s_cbranch_vccnz L_rpoll")
a("L_rgot:")
a("s_waitcnt vmcnt(0)")
stamp(12)
count(21)
for u in range(5): a(f"v_perm_b32 v{RG+4*u+3}, v{RG+4*u}, v{RG+4*u+1}, s48")
for u in range(5): a(f"v_perm_b32 v{RG+4*u+3}, v{RG+4*u+3}, v{RG+4*u+2}, s49")
Y = RG + 16
a(f"v_pk_add_f32 v[{RG}:{RG+1}], v[{RG}:{RG+1}], v[{RG+4}:{RG+5}]")
a(f"v_pk_add_f32 v[{RG+8}:{RG+9}], v[{RG+8}:{RG+9}], v[{RG+12}:{RG+13}]")
a(f"v_permlane32_swap_b32 v{Y}, v{Y+1}")
a(f"v_pk_add_f32 v[{RG+2}:{RG+3}], v[{RG+2}:{RG+3}], v[{RG+6}:{RG+7}]")
a(f"v_pk_add_f32 v[{RG+10}:{RG+11}], v[{RG+10}:{RG+11}], v[{RG+14}:{RG+15}]")
a(f"v_permlane32_swap_b32 v{Y+2}, v{Y+3}")
a(f"v_pk_add_f32 v[{RG}:{RG+1}], v[{RG}:{RG+1}], v[{RG+8}:{RG+9}]")
a(f"v_pk_add_f32 v[{RG+2}:{RG+3}], v[{RG+2}:{RG+3}], v[{RG+10}:{RG+11}]")
a(f"v_add_f32 v{Y}, v{Y}, v{Y+1}")
a(f"v_add_f32 v{Y+2}, v{Y+2}, v{Y+3}")
a(f"v_permlane32_swap_b32 v{RG}, v{RG+1}")
a(f"v_permlane32_swap_b32 v{RG+2}, v{RG+3}")
a(f"v_permlane16_swap_b32 v{Y}, v{Y+2}")
a(f"v_add_f32 v{RG}, v{RG}, v{RG+1}")
a(f"v_add_f32 v{RG+2}, v{RG+2}, v{RG+3}")
a(f"v_add_f32 v{Y}, v{Y}, v{Y+2}")
a(f"v_permlane16_swap_b32 v{RG}, v{RG+2}")
a(f"v_add_f32 v{RG}, v{RG}, v{RG+2}")
dpp("v_add_f32", "v17", f"v{Y}", f"v{Y}", "row_ror:8")
a("s_mov_b32 s32, 0x00ff00ff")
a("s_mov_b32 s33, 0x00ff00ff")
dpp("v_add_f32", "v16", f"v{RG}", f"v{RG}", "row_ror:8")
a("s_mov_b64 exec, s[32:33]")
a(f"global_store_dwordx4 {vA5}, v[16:19], s[68:69] sc1")
stamp(13)
diag_flush()
a("s_endpgm")
a("L_final:")
a("s_waitcnt vmcnt(0)")
a(f"v_lshlrev_b32 v48, 16, v{X0}")
a(f"v_lshlrev_b32 v49, 16, v{X0+1}")
a("L_fpoll:")
a(f"global_load_dwordx4 {vr(32)}, v14, s[46:47] sc1")
a("s_sub_u32 s100, s100, 1")
a("s_cbranch_scc1 L_fgot")
a("s_waitcnt vmcnt(0)")
tagcheck([35])
a("s_cbranch_vccnz L_fpoll")
a("L_fgot:")
a("s_waitcnt vmcnt(0)")
stamp(13)
count(21)
dpp("v_add_f32", "v32", "v32", "v32", "row_ror:8")
dpp("v_add_f32", "v33", "v33", "v33", "row_ror:8")
a("v_mov_b32 v34, v32")
a("v_mov_b32 v35, v33")
a("v_permlane16_swap_b32 v32, v34")
a("v_permlane16_swap_b32 v33, v35")
a("v_pk_add_f32 v[32:33], v[32:33], v[34:35]")
a("v_mov_b32 v34, v32")
a("v_mov_b32 v35, v33")
a("v_permlane32_swap_b32 v32, v34")
a("v_permlane32_swap_b32 v33, v35")
a("v_pk_add_f32 v[32:33], v[32:33], v[34:35]")
bf16_round_pair("v32", "v33", "v32", "v33", "v9")
a("v_add_f32 v33, v33, v49")
bf16_round("v33", "v33")
a("v_mul_f32 v50, 0xbfb8aa3b, v33")
a("v_exp_f32 v50, v50")
a("v_add_f32 v50, 1.0, v50")
a("v_rcp_f32 v50, v50")
a("v_mul_f32 v50, v50, v33")
bf16_round("v50", "v50")
a("v_mul_f32 v32, v32, v50")
bf16_round("v32", "v32")
a("v_add_f32 v32, v32, v48")
a("v_cvt_pk_bf16_f32 v32, v32, v32")
a("s_mov_b64 exec, 0xff")
a(f"global_store_short {vA6}, v32, s[12:13]")
a("s_cmp_lg_u32 s2, 128")
a("s_cbranch_scc1 L_noep")
a("s_mov_b64 exec, 1")
a(f"global_store_dword v{ZR}, v19, s[14:15]")
if AMP:
    a("s_memrealtime s[70:71]")
    a("s_waitcnt lgkmcnt(0)")
    a("s_sub_u32 s72, s70, s58")
    if AMODE:
        a("s_mov_b64 exec, -1")
        sbase(60, 14, WS_DIAG)
        a(f"v_lshlrev_b32 v8, 3, {vLANE}")
        a("L_es:")
        a("global_load_dwordx2 v[40:41], v8, s[60:61] sc1")
        a("s_waitcnt vmcnt(0)")
        a("v_cmp_ne_u32 vcc, s6, v41")
        a("s_cbranch_vccnz L_es")
        a("v_subrev_u32 v40, s58, v40")
        a("v_mov_b32 v42, v40")
        a("v_mov_b32 v43, v40")
        wave_allreduce("v_min_i32", "v42", "v44")
        wave_allreduce("v_max_i32", "v43", "v44")
        a("s_nop 1")
        a("v_readfirstlane_b32 s74, v42")
        a("v_readfirstlane_b32 s75, v43")
        a("s_nop 3")
        if AMODE == 1: a("s_sub_u32 s72, s72, s74")
        if AMODE == 2: a("s_sub_u32 s72, s75, s74")
        if AMODE >= 10:
            a(f"v_readlane_b32 s75, v40, {AMODE - 10}")
            a("s_nop 3")
            a("s_sub_u32 s72, s75, s74")
    a(f"s_mul_i32 s72, s72, {AMP}")
    a("s_min_u32 s72, s72, 100000")
    a("L_amp:")
    a("s_memrealtime s[74:75]")
    a("s_waitcnt lgkmcnt(0)")
    a("s_sub_u32 s73, s74, s70")
    a("s_cmp_lt_u32 s73, s72")
    a("s_cbranch_scc1 L_amp")
a("L_noep:")
if LITE:
    DIAG = 1; stamp(14); diag_flush(); DIAG = 0
stamp(14)
diag_flush()
a("L_end:")
a("s_endpgm")
a(".fill 1024, 4, 0xbf810000")

nv = 176 if (DIAG or LITE) else NVGPR
txt = header
txt += f"; @launch grid=(256,1,1) block=(512,1,1) lds={LDS_BYTES}\n"
txt += '.amdgcn_target "amdgcn-amd-amdhsa--gfx950"\n.text\n'
txt += f".globl {NAME}_kernel\n.p2align 8\n.type {NAME}_kernel,@function\n"
txt += a.text()
txt += f""".section .rodata,"a"
.p2align 6
.amdhsa_kernel {NAME}_kernel
  .amdhsa_next_free_vgpr {nv}
  .amdhsa_next_free_sgpr 102
  .amdhsa_accum_offset {nv}
  .amdhsa_group_segment_fixed_size 0
  .amdhsa_kernarg_size 104
  .amdhsa_user_sgpr_count 2
  .amdhsa_user_sgpr_kernarg_segment_ptr 1
  .amdhsa_system_sgpr_workgroup_id_x 1
.end_amdhsa_kernel
"""
open(OUT, "w").write(txt)
```

```python
import sys
sys.path.insert(0, "work")
from asmlib import Asm
NAME = "recurrent_scan__sliding_block_cached__dense_activation_gelu__decode"
DIAG = "--diag" in sys.argv
OUT = [a for a in sys.argv[1:] if not a.startswith("--")][0]
def opt(name, default):
    for x in sys.argv:
        if x.startswith("--" + name + "="): return int(x.split("=")[1])
    return default
NV1 = opt("nv1", 1)
NW1 = opt("nw1", 4)
NOFAST = opt("nofast", 0)
LITE = opt("lite", 0)
AMP = opt("amp", 0)
WARM = opt("warm", 1)
AMODE = opt("amode", 0)
WF = {0: "sc1", 1: "nt", 2: "sc1 nt"}[opt("wf", 0)]
KPRE = opt("kpre", 4)
W1L = opt("w1l", 1)
QL2 = opt("ql2", 0)
KL = opt("kl", 1)

WS_Q = 0x10000
WS_H = 0x40000
WS_F = 0x70000
WS_R = 0x80000
WS_OA = 0x200000
SLOW = 0x300000
WS_DIAG = 0x800000
HSTR = 16512
L_WQ = 0x0000
L_W1 = 0x4000
L_XN = 0x6000
L_QS = 0x6400
L_MX = 0x6800
L_LS = 0x6810
L_FL = 0x6820
L_OR = 0x7000
LDS_BYTES = L_OR + 8 * 3072
SPIN = 1 << 18

a = Asm()
header = open("cdna_kernels/" + NAME + ".s.ref").read().split("; Override launch")[0]
vLANE, vI16, vQ4 = "v1", "v2", "v3"
vM = ["v4", "v5", "v6", "v7"]
vN = ["v126", "v127"]
K0, V0, QB0, G0, PA0, W0 = 16, 32, 48, 64, 80, 108
X0 = 128
NVGPR = 168
vST, vST2 = "v168", "v169"
AC = 56
ZR = 60
vQA, vHD, vOW, vA1, vA2, vA3, vA4, vA5, vA6, vA7 = [f"v{96+i}" for i in range(10)]
def vr(b, n=4): return f"v[{b}:{b+n-1}]"

def stamp(idx):
    if not DIAG: return
    a(f"s_memrealtime s[98:99]")
    a("s_waitcnt lgkmcnt(0)")
    a(f"v_writelane_b32 {vST}, s98, {idx}")
def count(idx):
    if not DIAG: return
    a(f"s_sub_u32 s101, {SPIN}, s100")
    a(f"v_writelane_b32 {vST}, s101, {idx}")
def diag_flush():
    if not DIAG: return
    a("s_mov_b64 exec, -1")
    a("s_lshl_b32 s7, s2, 3")
    a("s_add_u32 s7, s7, s5")
    a("s_lshl_b32 s7, s7, 8")
    a(f"s_add_u32 s7, s7, {WS_DIAG}")
    a("s_add_u32 s98, s14, s7")
    a("s_addc_u32 s99, s15, 0")
    a(f"v_lshlrev_b32 {vST2}, 2, {vLANE}")
    a(f"global_store_dword {vST2}, {vST}, s[98:99]")
def bf16_round_pair(dlo, dhi, slo, shi, tmp):
    a(f"v_cvt_pk_bf16_f32 {tmp}, {slo}, {shi}")
    a(f"v_lshlrev_b32 {dlo}, 16, {tmp}")
    a(f"v_and_b32 {dhi}, 0xffff0000, {tmp}")
def bf16_round(d, s):
    a(f"v_cvt_pk_bf16_f32 {d}, {s}, {s}")
    a(f"v_and_b32 {d}, 0xffff0000, {d}")
def dpp(op, d, s0, s1, ctrl):
    if op == "v_mov_b32": a(f"v_mov_b32_dpp {d}, {s0} {ctrl} row_mask:0xf bank_mask:0xf")
    else: a(f"{op}_dpp {d}, {s0}, {s1} {ctrl} row_mask:0xf bank_mask:0xf")
def row_allreduce(op, x):
    for r in (8, 4, 2, 1): dpp(op, x, x, x, f"row_ror:{r}")
def wave_allreduce(op, x, t):
    row_allreduce(op, x)
    a(f"v_mov_b32 {t}, {x}")
    a(f"v_permlane16_swap_b32 {x}, {t}")
    a(f"{op} {x}, {x}, {t}")
    a(f"v_mov_b32 {t}, {x}")
    a(f"v_permlane32_swap_b32 {x}, {t}")
    a(f"{op} {x}, {x}, {t}")
def sbase(dst, src, off):
    a(f"s_add_u32 s{dst}, s{src}, {off}")
    a(f"s_addc_u32 s{dst+1}, s{src+1}, 0")
def tagcheck(regs, t0="v12", t1="v13"):
    if len(regs) == 1:
        a(f"v_cmp_ne_u32 vcc, s6, v{regs[0]}"); return
    a(f"v_xor_b32 {t0}, s6, v{regs[0]}")
    i = 1
    while i < len(regs):
        a(f"v_xor_b32 {t1}, s6, v{regs[i]}")
        if i + 1 < len(regs):
            a(f"v_xor_b32 v{regs[i+1]}, s6, v{regs[i+1]}")
            a(f"v_or3_b32 {t0}, {t0}, {t1}, v{regs[i+1]}")
            i += 2
        else:
            a(f"v_or_b32 {t0}, {t0}, {t1}")
            i += 1
    a(f"v_cmp_ne_u32 vcc, 0, {t0}")
def pack24(dst, src):
    for n in range(3):
        a(f"v_perm_b32 v{dst+n}, v{src+n}, v{src+3}, s{88+n}")
def kload(n):
    kh, hf = n >> 1, n & 1
    a(f"global_load_dwordx4 {vr(K0+8*kh+4*hf)}, v13, s[18:19] offset:{kh*2048+hf*128} nt")
def vload(n):
    kh, aa = n >> 1, n & 1
    a(f"global_load_dwordx4 {vr(V0+4*n)}, v15, s[20:21] offset:{kh*2048+aa*256} nt")
def pub2(voff, data, base, tag):
    a("s_cmp_lg_u32 s85, 0")
    a(f"s_cbranch_scc1 {tag}_slow")
    a(f"global_store_dwordx4 {voff}, {data}, s[{base}:{base+1}]")
    a(f"s_branch {tag}_done")
    a(f"{tag}_slow:")
    sbase(base, base, SLOW)
    a(f"global_store_dwordx4 {voff}, {data}, s[{base}:{base+1}] sc1")
    a(f"{tag}_done:")

a(f"{NAME}_kernel:")
if DIAG or LITE: a("s_memrealtime s[100:101]")
if AMP: a("s_memrealtime s[58:59]")
a("s_cmp_ge_u32 s2, 256")
a("s_cbranch_scc1 L_end")
a("s_load_dwordx16 s[16:31], s[0:1], 0")
a("s_load_dwordx4 s[8:11], s[0:1], 64")
a("s_load_dwordx2 s[12:13], s[0:1], 80")
a("s_load_dwordx2 s[14:15], s[0:1], 96")
a(f"v_and_b32 {vLANE}, 63, v0")
a("v_lshrrev_b32 v8, 6, v0")
a(f"v_and_b32 {vI16}, 15, v0")
a(f"v_bfe_u32 {vQ4}, v0, 4, 2")
a("v_readfirstlane_b32 s5, v8")
a("s_lshr_b32 s4, s2, 3")
a(f"v_lshlrev_b32 v14, 4, {vLANE}")
a("s_getpc_b64 s[54:55]")
a("s_and_b32 s56, s4, 7")
a("s_cmp_lg_u32 s56, s5")
a("s_cbranch_scc1 L_nopf")
a("s_lshl_b32 s56, s56, 10")
sbase(54, 54, "s56")
a(f"global_load_dwordx4 {vr(X0+32)}, v14, s[54:55]")
a("L_nopf:")
a("s_and_b32 s3, s2, 7")
if DIAG or LITE: a(f"v_mov_b32 {vST}, 0")
a(f"v_bfe_u32 v8, {vLANE}, 1, 3")
a(f"v_and_b32 v9, 1, {vLANE}")
a("v_lshlrev_b32 v9, 4, v9")
a(f"v_lshl_add_u32 v9, {vQ4}, 5, v9")
a("v_lshl_add_u32 v10, v8, 13, v9")
a("v_xor_b32 v11, 0x8000, v10")
a("v_add_u32 v11, 0x10000, v11")
a("s_lshl_b32 s96, s3, 5")
a("s_add_u32 s96, s96, s4")
a("s_lshr_b32 s32, s96, 2")
a("s_lshl_b32 s32, s32, 7")
a("s_and_b32 s97, s4, 3")
a("s_lshl_b32 s33, s97, 3")
a("s_add_u32 s33, s33, s5")
a("s_lshl_b32 s33, s33, 17")
a("s_add_u32 s32, s32, s33")
a("s_lshl_b32 s39, s5, 11")
a("s_mov_b32 m0, s39")
a("s_add_u32 s39, s39, 1024")
a("v_mul_u32_u24 v124, 3584, v8")
a("v_add_u32 v124, v124, v9")
a("v_xor_b32 v125, 4, v8")
a("v_mul_u32_u24 v125, 3584, v125")
a("v_add_u32 v125, v125, v9")
a("s_and_b32 s36, s5, 3")
a("s_lshr_b32 s35, s96, 3")
a("s_lshl_b32 s35, s35, 7")
a("s_and_b32 s34, s96, 7")
a("s_lshl_b32 s34, s34, 2")
a("s_add_u32 s34, s34, s36")
a(f"s_mul_i32 s34, s34, {16*3584}")
a("s_add_u32 s34, s34, s35")
a("s_lshl_b32 s40, s36, 11")
a(f"s_add_u32 s40, s40, {L_W1}")
a(f"v_lshlrev_b32 v13, 7, {vI16}")
a("v_and_b32 v13, 0x700, v13")
a(f"v_and_b32 v12, 1, {vI16}")
a("v_lshl_add_u32 v13, v12, 6, v13")
a(f"v_lshl_add_u32 v13, {vQ4}, 4, v13")
a("s_lshl_b32 s37, s3, 6")
a("s_add_u32 s37, s37, s5")
a("s_lshl_b32 s37, s37, 5")
a("s_add_u32 s37, s37, s4")
a("s_lshl_b32 s37, s37, 12")
a("s_add_u32 s37, s37, 0x700000")
a("s_cmp_lg_u32 s5, 0")
a("s_waitcnt lgkmcnt(0)")
a("s_cbranch_scc1 L_nox")
a(f"global_load_dwordx4 {vr(W0)}, v14, s[16:17]")
a("L_nox:")
sbase(22, 22, "s32")
a("global_load_lds_dwordx4 v10, s[22:23] nt")
a("s_mov_b32 m0, s39")
sbase(18, 18, "s37")
a("global_load_lds_dwordx4 v11, s[22:23] nt")
a("s_load_dword s6, s[14:15], 0")
def w1blk():
    a("s_cmp_lt_u32 s5, 4")
    a("s_cbranch_scc1 L_now1")
    a("s_cmp_ge_u32 s96, 224")
    a("s_cbranch_scc1 L_now1")
    a("s_mov_b32 m0, s40")
    sbase(28, 28, "s34")
    a("global_load_lds_dwordx4 v124, s[28:29] nt")
    a("s_add_u32 s40, s40, 1024")
    a("s_mov_b32 m0, s40")
    sbase(28, 28, 8*3584)
    a("global_load_lds_dwordx4 v125, s[28:29] nt")
    a("L_now1:")
if not W1L: w1blk()
if DIAG: a("s_memrealtime s[84:85]")
a("s_barrier")
kload(0); kload(1)
if W1L: w1blk()
if QL2:
    a("s_cmp_lg_u32 s5, 1")
    a("s_cbranch_scc1 L_noqw")
    a("s_lshl_b32 s56, s96, 9")
    a(f"s_add_u32 s56, s56, {WS_Q}")
    sbase(54, 14, "s56")
    a("s_mov_b32 exec_hi, 0")
    a(f"global_load_dwordx4 {vr(X0+36)}, v14, s[54:55] sc1")
    a("s_mov_b64 exec, -1")
    a("L_noqw:")
if DIAG or LITE: a(f"v_writelane_b32 {vST}, s100, 0")
a("s_cmp_lg_u32 s5, 0")
a("s_cbranch_scc1 L_noln")
a("v_mov_b32 v8, 0")
for i in range(4): a(f"v_mov_b32 v{W0+4+i}, 0xff800000")
for i in range(4): a(f"v_mov_b32 v{W0+8+i}, 0")
a("s_mov_b64 exec, 1")
a(f"ds_write_b128 v8, {vr(W0+4)} offset:{L_MX}")
a(f"ds_write_b128 v8, {vr(W0+8)} offset:{L_LS}")
a(f"ds_write_b64 v8, v[{W0+8}:{W0+9}] offset:{L_FL}")
a("s_mov_b64 exec, -1")
a("s_waitcnt vmcnt(4)")
if DIAG: a("s_memrealtime s[94:95]")
X = [f"v{V0+i}" for i in range(8)]
for d in range(4):
    a(f"v_lshlrev_b32 {X[2*d]}, 16, v{W0+d}")
    a(f"v_and_b32 {X[2*d+1]}, 0xffff0000, v{W0+d}")
a(f"v_pk_add_f32 v[8:9], v[{V0}:{V0+1}], v[{V0+2}:{V0+3}]")
a(f"v_pk_add_f32 v[10:11], v[{V0+4}:{V0+5}], v[{V0+6}:{V0+7}]")
a("v_pk_add_f32 v[8:9], v[8:9], v[10:11]")
a("v_add_f32 v8, v8, v9")
wave_allreduce("v_add_f32", "v8", "v9")
a("v_mul_f32 v8, 0x3b000000, v8")
D = [f"v{V0+8+i}" for i in range(8)]
for i in range(8): a(f"v_sub_f32 {D[i]}, {X[i]}, v8")
a(f"v_mul_f32 v10, {D[0]}, {D[0]}")
a(f"v_mul_f32 v11, {D[1]}, {D[1]}")
for i in range(2, 8): a(f"v_fmac_f32 v{10+(i&1)}, {D[i]}, {D[i]}")
a("v_add_f32 v10, v10, v11")
bf16_round("v8", "v8")
for r in (8, 4, 2, 1):
    dpp("v_add_f32", "v10", "v10", "v10", f"row_ror:{r}")
    k = {8: 0, 4: 2, 2: 4, 1: 6}[r]
    a(f"v_sub_f32 {D[k]}, {X[k]}, v8")
    a(f"v_sub_f32 {D[k+1]}, {X[k+1]}, v8")
a("v_mov_b32 v9, v10")
bf16_round_pair(D[0], D[1], D[0], D[1], "v11")
a("v_permlane16_swap_b32 v10, v9")
a("v_add_f32 v10, v10, v9")
a("v_mov_b32 v9, v10")
bf16_round_pair(D[2], D[3], D[2], D[3], "v11")
a("v_permlane32_swap_b32 v10, v9")
a("v_add_f32 v10, v10, v9")
a("v_mul_f32 v10, 0x3b000000, v10")
bf16_round("v10", "v10")
a("v_add_f32 v10, 0x3727c5ac, v10")
bf16_round("v10", "v10")
a("v_sqrt_f32 v10, v10")
bf16_round_pair(D[4], D[5], D[4], D[5], "v11")
bf16_round("v10", "v10")
a("v_rcp_f32 v10, v10")
bf16_round_pair(D[6], D[7], D[6], D[7], "v11")
for i in range(8): a(f"v_mul_f32 {D[i]}, {D[i]}, v10")
for d in range(4): a(f"v_cvt_pk_bf16_f32 v{W0+d}, {D[2*d]}, {D[2*d+1]}")
a(f"ds_write_b128 v14, {vr(W0)} offset:{L_XN}")
a("L_noln:")
sbase(20, 20, "s37")
a("s_getreg_b32 s86, hwreg(HW_REG_XCC_ID, 0, 4)")
if NOFAST: a("s_add_u32 s86, s86, s2")
a(f"v_lshlrev_b32 v15, 9, {vQ4}")
a(f"v_lshl_add_u32 v15, {vI16}, 4, v15")
a("v_cmp_eq_u32 vcc, 1, v12")
a("v_mov_b32 v9, 0xffff")
a("v_mov_b32 v10, 0xffff0000")
a("v_cndmask_b32 v9, v9, v10, vcc")
a("s_mov_b64 s[92:93], vcc")
a(f"v_bfe_u32 v8, {vI16}, 1, 2")
for d in range(4):
    a(f"v_cmp_eq_u32 vcc, {d}, v8")
    a(f"v_cndmask_b32 {vM[d]}, 0, v9, vcc")
a(f"v_or_b32 {vN[0]}, {vM[0]}, {vM[2]}")
a(f"v_or_b32 {vN[1]}, {vM[1]}, {vM[3]}")
for p in (44, 46, 62, 64, 66, 68): a(f"s_mov_b64 s[{p}:{p+1}], s[14:15]")
for r in range(99, 106): a(f"v_mov_b32 v{r}, 0")
for i in range(4): a(f"v_mov_b32 v{ZR+i}, 0")
a("s_mov_b32 s88, 0x07060503")
a("s_mov_b32 s89, 0x07060502")
a("s_mov_b32 s90, 0x07060501")
a("s_mov_b32 s80, 0x3db504f3")
a("s_mov_b32 s81, 0x3fb8aa3b")
a("s_mov_b32 s82, 0x11111111")
a("s_mov_b32 s83, 0x11111111")
a(f"v_lshrrev_b32 v8, 2, {vI16}")
a(f"v_lshlrev_b32 {vHD}, 2, v8")
a("v_lshlrev_b32 v8, 8, v8")
a(f"v_lshl_add_u32 v8, {vQ4}, 4, v8")
a(f"v_lshl_add_u32 {vQA}, v12, 6, v8")
a("s_mul_i32 s32, s5, 3072")
a(f"v_mul_u32_u24 {vOW}, 768, {vQ4}")
a(f"v_lshl_add_u32 {vOW}, {vI16}, 4, {vOW}")
a(f"v_add_u32 {vOW}, s32, {vOW}")
a("s_lshl_b32 s32, s36, 8")
a(f"v_lshlrev_b32 v8, 10, {vQ4}")
a(f"v_lshl_add_u32 v8, {vI16}, 3, v8")
a("v_add_u32 v8, s32, v8")
a(f"v_and_b32 v9, 1, {vQ4}")
a("v_lshlrev_b32 v9, 7, v9")
a("v_add_u32 v10, v8, v9")
a("v_xor_b32 v9, 128, v9")
a("v_add_u32 v11, v8, v9")
a(f"v_lshlrev_b32 v124, 4, {vQ4}")
a(f"v_lshlrev_b32 v125, 3, {vLANE}")
a(f"s_mul_i32 s41, s3, {0x14000}")
a(f"s_add_u32 s41, s41, {WS_R}")
a(f"v_and_b32 v8, 3, {vI16}")
a("v_lshlrev_b32 v8, 5, v8")
a(f"v_lshl_add_u32 v8, {vQ4}, 4, v8")
a(f"v_lshrrev_b32 v9, 2, {vI16}")
def partial(nsteps, lbase, XA):
    for t in range(nsteps):
        a(f"ds_read_b128 {vr(XA+4*t)}, v124 offset:{L_XN + t*64}")
        b = PA0 + 4*t
        a(f"ds_read_b64_tr_b16 v[{b}:{b+1}], v10 offset:{lbase + t*4096}")
        a(f"ds_read_b64_tr_b16 v[{b+2}:{b+3}], v11 offset:{lbase + t*4096}")
    if nsteps == 4: a(f"v_mov_b32 v{QB0+2}, s86")
    else: a(f"v_mov_b32 v{QB0+1}, s6")
    a(f"v_mov_b32 v{QB0+3}, s6")
    for t in range(nsteps):
        a(f"s_waitcnt lgkmcnt({3*(nsteps-1-t)})")
        c = "0" if t == 0 else vr(AC)
        a(f"v_mfma_f32_16x16x32_bf16 {vr(AC)}, {vr(XA+4*t)}, {vr(PA0+4*t)}, {c}")
def partial_fin(k, dual=0):
    a(f"v_mov_b32 v{QB0}, v{AC}")
    dpp("v_mov_b32", f"v{QB0+k}", f"v{AC}", None, "quad_perm:[1,0,3,2]")
    a("s_mov_b64 exec, 0x5555")
    if dual:
        if not NOFAST: a(f"global_store_dwordx4 v125, {vr(QB0)}, s[42:43]")
        a(f"global_store_dwordx4 v125, {vr(QB0)}, s[52:53] sc1")
    else:
        a(f"global_store_dwordx4 v125, {vr(QB0)}, s[42:43] sc1")
    a("s_mov_b64 exec, -1")
def tagcalc():
    a("s_waitcnt lgkmcnt(0)")
    if DIAG:
        a(f"v_writelane_b32 {vST}, s94, 15")
        a(f"v_writelane_b32 {vST}, s84, 23")
    stamp(16)
    a("s_lshr_b32 s6, s6, 1")
    a("s_mul_i32 s6, s6, 0x5DEECE6D")
    a("s_add_u32 s6, s6, 0xB")
    a("s_lshl_b32 s6, s6, 1")
    a("s_or_b32 s6, s6, 1")
HG = X0 + 28
B1R = X0 + 36
def hgather():
    a(f"global_load_dwordx4 {vr(HG)}, v{W0}, s[44:45] sc1")
    a(f"global_load_dwordx4 {vr(HG+4)}, v{W0}, s[44:45] offset:16 sc1")
a("s_cmp_ge_u32 s5, 4")
a("s_cbranch_scc1 L_B0b")
a(f"v_lshl_add_u32 {vA2}, v9, 12, v8")
a("s_and_b32 s32, s4, 28")
a("s_add_u32 s32, s32, s5")
a("s_lshl_b32 s33, s97, 14")
a("s_lshl_b32 s34, s32, 7")
a("s_add_u32 s33, s33, s34")
a("s_add_u32 s33, s33, s41")
sbase(60, 14, "s33")
for n in range(2, KPRE): kload(n)
a("s_lshl_b32 s33, s3, 5")
a("s_add_u32 s91, s32, s33")
a("s_lshl_b32 s32, s91, 14")
a("s_lshl_b32 s33, s97, 8")
a("s_add_u32 s32, s32, s33")
sbase(24, 24, "s32")
a("s_lshl_b32 s32, s91, 12")
a(f"s_add_u32 s32, s32, {WS_OA}")
sbase(62, 14, "s32")
a(f"v_lshlrev_b32 {vA3}, 12, {vQ4}")
a(f"v_lshl_add_u32 {vA3}, {vI16}, 4, {vA3}")
a(f"v_lshrrev_b32 v8, 1, {vI16}")
a("v_lshlrev_b32 v8, 7, v8")
a(f"v_lshl_add_u32 v8, {vQ4}, 5, v8")
a(f"v_lshl_add_u32 {vA1}, v12, 4, v8")
a("s_lshl_b32 s32, s97, 8")
a("v_add_u32 v124, s32, v124")
a("s_lshl_b32 s32, s3, 14")
a("s_lshl_b32 s33, s97, 12")
a("s_add_u32 s33, s32, s33")
a("s_lshr_b32 s34, s4, 2")
a("s_lshl_b32 s34, s34, 2")
a("s_add_u32 s34, s34, s5")
a("s_lshl_b32 s34, s34, 7")
a("s_add_u32 s33, s33, s34")
a(f"s_add_u32 s33, s33, {WS_Q}")
sbase(42, 14, "s33")
a("s_lshl_b32 s33, s5, 10")
a("s_add_u32 s32, s32, s33")
a(f"s_add_u32 s32, s32, {WS_Q + 4096}")
sbase(44, 14, "s32")
sbase(46, 44, 8192)
a("s_lshl_b32 s32, s5, 8")
a(f"v_lshl_add_u32 {vA4}, {vLANE}, 2, s32")
tagcalc()
if QL2:
    a("s_cmp_eq_u32 s5, 1")
    a("s_cbranch_scc1 L_aw1")
a(f"s_waitcnt vmcnt({KPRE})")
if QL2:
    a("L_aw1:")
    a(f"s_waitcnt vmcnt({KPRE+1})")
    sbase(52, 42, SLOW)
stamp(2)
a("s_barrier")
partial(4, L_WQ, G0)
partial_fin(1, QL2)
stamp(4)
a("s_barrier")
for n in range(KPRE, 4): kload(n)
def woload(rg): a(f"global_load_dwordx4 {vr(W0+4*rg)}, {vA3}, s[24:25] offset:{rg*1024} nt")
for n in range(NV1): vload(n)
for n in range(4): woload(n)
stamp(1)
a("s_barrier")
def qgather():
    a(f"global_load_dwordx4 {vr(G0)}, v14, s[44:45] offset:-4096 sc1")
    a(f"global_load_dwordx4 {vr(G0+4)}, v14, s[44:45] sc1")
    a(f"global_load_dwordx4 {vr(G0+8)}, v14, s[46:47] offset:-4096 sc1")
    a(f"global_load_dwordx4 {vr(G0+12)}, v14, s[46:47] sc1")
qgather()
stamp(22)
a("s_barrier")
for n in range(NV1, 4): vload(n)
stamp(5)
a(f"s_mov_b32 s100, {SPIN}")
a("s_mov_b32 s87, 1")
if QL2: a(f"s_mov_b32 s57, {(-SLOW) & 0xffffffff}")
a(f"s_waitcnt vmcnt({4 - NV1})")
stamp(19)
a("s_branch L_qchk")
a("L_qpoll:")
if QL2:
    a(f"s_xor_b32 s57, s57, {SLOW ^ ((-SLOW) & 0xffffffff)}")
    a("s_ashr_i32 s56, s57, 31")
    a("s_add_u32 s44, s44, s57")
    a("s_addc_u32 s45, s45, s56")
    a("s_add_u32 s46, s46, s57")
    a("s_addc_u32 s47, s47, s56")
qgather()
a("s_waitcnt vmcnt(0)")
a("L_qchk:")
tagcheck([G0 + 3 + 4*n for n in range(4)])
a("s_sub_u32 s100, s100, 1")
a("s_cbranch_scc1 L_qgot")
a("s_cbranch_vccnz L_qpoll")
a("L_qgot:")
a(f"v_pk_add_f32 v[{G0}:{G0+1}], v[{G0}:{G0+1}], v[{G0+4}:{G0+5}]")
a(f"v_pk_add_f32 v[{G0+8}:{G0+9}], v[{G0+8}:{G0+9}], v[{G0+12}:{G0+13}]")
a(f"v_xor_b32 v12, s86, v{G0+2}")
a(f"v_pk_add_f32 v[{G0}:{G0+1}], v[{G0}:{G0+1}], v[{G0+8}:{G0+9}]")
a(f"v_xor_b32 v13, s86, v{G0+6}")
a(f"v_xor_b32 v{G0+10}, s86, v{G0+10}")
a(f"v_cvt_pk_bf16_f32 v8, v{G0}, v{G0+1}")
a(f"v_xor_b32 v{G0+14}, s86, v{G0+14}")
a(f"ds_write_b32 {vA4}, v8 offset:{L_QS}")
a(f"v_or3_b32 v12, v12, v13, v{G0+10}")
a(f"v_or_b32 v12, v12, v{G0+14}")
a("v_cmp_ne_u32 vcc, 0, v12")
count(20)
a("s_cbranch_vccz L_B1")
a("v_mov_b32 v13, 1")
a(f"ds_write_b32 v{ZR}, v13 offset:{L_FL}")
a("s_branch L_B1")
a("L_B0b:")
a(f"v_lshrrev_b32 v12, 3, {vLANE}")
a("v_lshlrev_b32 v12, 12, v12")
a(f"v_and_b32 {vA2}, 7, {vLANE}")
a(f"v_lshl_add_u32 {vA2}, {vA2}, 4, v12")
a("s_lshl_b32 s32, s3, 17")
a("s_lshl_b32 s33, s36, 15")
a("s_add_u32 s32, s32, s33")
a("s_lshl_b32 s33, s4, 7")
a("s_add_u32 s32, s32, s33")
a(f"s_add_u32 s32, s32, {WS_OA}")
sbase(60, 14, "s32")
a(f"v_lshl_add_u32 {vA4}, v9, 10, v8")
a("s_lshl_b32 s32, s97, 12")
a("s_lshr_b32 s33, s4, 2")
a("s_lshl_b32 s33, s33, 7")
a("s_add_u32 s32, s32, s33")
a("s_add_u32 s32, s32, s41")
a("s_add_u32 s32, s32, 0x10000")
sbase(62, 14, "s32")
for n in range(2, KPRE): kload(n)
a("s_and_b32 s33, s96, 7")
a("s_lshl_b32 s32, s33, 7")
a("v_add_u32 v124, s32, v124")
a(f"s_mul_i32 s32, s33, {HSTR}")
a("s_lshr_b32 s33, s96, 3")
a("s_lshl_b32 s33, s33, 9")
a("s_add_u32 s32, s32, s33")
a("s_lshl_b32 s33, s36, 7")
a("s_add_u32 s32, s32, s33")
a(f"s_add_u32 s32, s32, {WS_H}")
sbase(42, 14, "s32")
a("s_lshr_b32 s7, s96, 2")
a("s_mul_i32 s7, s7, 28")
a("s_lshl_b32 s32, s7, 3")
a(f"s_add_u32 s32, s32, {WS_H}")
sbase(44, 14, "s32")
a("s_lshl_b32 s32, s7, 10")
a("s_lshl_b32 s33, s97, 8")
a("s_add_u32 s32, s32, s33")
sbase(8, 8, "s32")
a("s_lshl_b32 s32, s7, 1")
sbase(30, 30, "s32")
a(f"v_and_b32 v{W0}, 7, {vI16}")
a(f"v_mul_u32_u24 v{W0}, {HSTR}, v{W0}")
a(f"v_mul_u32_u24 v{W0+1}, 7, {vQ4}")
a(f"v_lshrrev_b32 v{W0+3}, 3, {vI16}")
a(f"v_lshl_add_u32 v{W0+3}, v{W0+3}, 2, v{W0+1}")
a(f"v_lshl_add_u32 v{W0}, v{W0+3}, 3, v{W0}")
a(f"v_lshlrev_b32 v{W0+3}, 1, v{W0+3}")
a(f"v_min_u32 v{W0+4}, 48, v{W0+3}")
a(f"v_lshlrev_b32 v{W0+1}, 10, v{W0+1}")
a(f"v_lshl_add_u32 v{W0+1}, {vI16}, 4, v{W0+1}")
a(f"v_add_u32 v{W0+2}, 4096, v{W0+1}")
a("s_mul_i32 s33, s36, 768")
a(f"v_bfe_u32 v9, {vLANE}, 1, 1")
a("v_mul_u32_u24 v9, 384, v9")
a(f"v_lshrrev_b32 v8, 2, {vLANE}")
a("v_lshl_add_u32 v9, v8, 4, v9")
a(f"v_and_b32 v8, 1, {vLANE}")
a("v_lshl_add_u32 v9, v8, 3, v9")
a(f"v_add_u32 {vA1}, s33, v9")
a("s_lshl_b32 s33, s36, 2")
a(f"v_mov_b32 {vA3}, s33")
a("s_and_b32 s32, s4, 15")
a("s_lshl_b32 s33, s32, 12")
a("s_add_u32 s33, s33, s41")
sbase(64, 14, "s33")
a("s_lshl_b32 s33, s32, 10")
a("s_add_u32 s33, s33, s41")
a("s_add_u32 s33, s33, 0x10000")
sbase(66, 14, "s33")
a("s_lshl_b32 s33, s32, 12")
a("s_lshl_b32 s34, s3, 7")
a("s_add_u32 s33, s33, s34")
a(f"s_add_u32 s33, s33, {WS_F}")
sbase(68, 14, "s33")
a(f"v_and_b32 v8, 1, {vQ4}")
a("v_lshlrev_b32 v8, 1, v8")
a(f"v_lshrrev_b32 v9, 1, {vQ4}")
a("v_add_u32 v8, v8, v9")
a(f"v_and_b32 v9, 1, {vI16}")
a("v_lshl_add_u32 v8, v9, 2, v8")
a(f"v_bfe_u32 v9, {vI16}, 1, 2")
a("v_lshlrev_b32 v9, 10, v9")
a(f"v_lshl_add_u32 {vA5}, v8, 4, v9")
a("s_and_b32 s32, s4, 7")
a("s_lshl_b32 s33, s3, 3")
a("s_add_u32 s32, s32, s33")
a("s_lshl_b32 s33, s32, 10")
a(f"s_add_u32 s33, s33, {WS_F}")
sbase(46, 14, "s33")
a("s_lshl_b32 s33, s32, 4")
sbase(16, 16, "s33")
sbase(10, 10, "s33")
sbase(12, 12, "s33")
a(f"v_and_b32 {vA6}, 7, {vLANE}")
a(f"v_lshlrev_b32 {vA6}, 1, {vA6}")
tagcalc()
if W1L:
    a("s_cmp_lt_u32 s96, 224")
    a("s_cbranch_scc1 L_bw1")
a(f"s_waitcnt vmcnt({KPRE})")
if W1L:
    a("L_bw1:")
    a(f"s_waitcnt vmcnt({KPRE+2})")
stamp(2)
a("s_barrier")
if not W1L:
    partial(2, L_W1, G0)
    partial_fin(2)
stamp(4)
a("s_barrier")
for n in range(KPRE, 4): kload(n)
for n in range(NV1): vload(n)
if W1L: a(f"s_waitcnt vmcnt({2 + NV1})")
a("s_mov_b32 s87, 0")
a("s_cmp_lg_u32 s5, 4")
a("s_cbranch_scc1 L_now2")
for rg in range(7):
    if rg < 4: a(f"global_load_dwordx4 {vr(X0+4*rg)}, v{W0+1}, s[8:9] offset:{rg*1024} nt")
    else: a(f"global_load_dwordx4 {vr(X0+4*rg)}, v{W0+2}, s[8:9] offset:{(rg-4)*1024} nt")
for n in range(3):
    a(f"global_load_ushort v{B1R+n}, v{W0+3}, s[30:31] offset:{2*n}")
a(f"global_load_ushort v{B1R+3}, v{W0+4}, s[30:31] offset:6")
a("s_mov_b32 s87, 2")
a("L_now2:")
a("s_cmp_lg_u32 s5, 5")
a("s_cbranch_scc1 L_nof")
a("s_lshr_b32 s32, s4, 3")
a("s_cmp_lt_u32 s32, 2")
a("s_cselect_b32 s87, 3, 0")
a("s_cmp_lg_u32 s32, 2")
a("s_cbranch_scc1 L_nof")
a(f"global_load_ushort v{X0}, {vA6}, s[16:17]")
a(f"global_load_ushort v{X0+1}, {vA6}, s[10:11]")
a(f"global_load_dwordx4 {vr(X0+4)}, v14, s[46:47] {WF}")
a("L_nof:")
stamp(1)
a("s_barrier")
if W1L:
    partial(2, L_W1, G0)
    partial_fin(2)
a("s_barrier")
for n in range(NV1, 4): vload(n)
a(f"s_waitcnt vmcnt({4 - NV1})")
a("L_B1:")
a("s_waitcnt lgkmcnt(0)")
stamp(6)
a("s_barrier")
for hf in range(2):
    a(f"ds_read_b128 {vr(QB0+4*hf)}, {vQA} offset:{L_QS + hf*128}")
a(f"ds_read_b32 v11, v{ZR} offset:{L_FL}")
DD = lambda kh: G0 + 4*kh
for hf in range(2):
    a(f"s_waitcnt lgkmcnt({2-hf})")
    for kh in range(2):
        c = "0" if hf == 0 else vr(DD(kh))
        a(f"v_mfma_f32_16x16x32_bf16 {vr(DD(kh))}, {vr(K0+8*kh+4*hf)}, {vr(QB0+4*hf)}, {c}")
a("s_cmp_eq_u32 s87, 0")
a("s_cbranch_scc1 L_lated")
a("s_cmp_eq_u32 s87, 1")
a("s_cbranch_scc1 L_late1")
a("s_cmp_eq_u32 s87, 2")
a("s_cbranch_scc1 L_late2")
for u in range(4):
    a(f"global_load_dwordx4 {vr(X0+4*u)}, v14, s[64:65] offset:{u*1024} {WF}")
a(f"global_load_dwordx4 {vr(X0+16)}, v14, s[66:67] {WF}")
a("s_branch L_lated")
a("L_late2:")
hgather()
a("s_branch L_lated")
a("L_late1:")
for u in range(4):
    a(f"global_load_dwordx4 {vr(X0+4*u)}, {vA1}, s[62:63] offset:{u*1024} {WF}")
a("L_lated:")
a("s_waitcnt lgkmcnt(0)")
a("v_readfirstlane_b32 s85, v11")
a("s_nop 3")
a(f"s_mov_b32 s100, {SPIN}")
S = [f"v{G0+8+n}" for n in range(4)]
for kh in range(2):
    for aa in range(2):
        d = DD(kh) + 2*aa
        a(f"v_cndmask_b32 {S[kh*2+aa]}, v{d}, v{d+1}, s[92:93]")
for n in range(4): dpp("v_add_f32", S[n], S[n], S[n], "quad_perm:[1,0,3,2]")
a(f"v_cvt_pk_bf16_f32 v9, {S[0]}, {S[1]}")
a(f"v_cvt_pk_bf16_f32 v10, {S[2]}, {S[3]}")
a(f"v_lshlrev_b32 {S[0]}, 16, v9")
a(f"v_and_b32 {S[1]}, 0xffff0000, v9")
a(f"v_lshlrev_b32 {S[2]}, 16, v10")
a(f"v_and_b32 {S[3]}, 0xffff0000, v10")
for n in range(4): a(f"v_mul_f32 {S[n]}, s80, {S[n]}")
a(f"v_cvt_pk_bf16_f32 v9, {S[0]}, {S[1]}")
a(f"v_cvt_pk_bf16_f32 v10, {S[2]}, {S[3]}")
a(f"v_lshlrev_b32 {S[0]}, 16, v9")
a(f"v_and_b32 {S[1]}, 0xffff0000, v9")
a(f"v_lshlrev_b32 {S[2]}, 16, v10")
a(f"v_and_b32 {S[3]}, 0xffff0000, v10")
a(f"v_max3_f32 v10, {S[0]}, {S[1]}, {S[2]}")
a(f"v_max_f32 v10, v10, {S[3]}")
a("s_mov_b64 exec, s[82:83]")
a(f"ds_max_f32 {vHD}, v10 offset:{L_MX}")
a("s_mov_b64 exec, -1")
a("s_waitcnt lgkmcnt(0)")
stamp(7)
a("s_barrier")
a(f"ds_read_b32 v10, {vHD} offset:{L_MX}")
a("s_waitcnt lgkmcnt(0)")
a("v_mul_f32 v10, s81, v10")
for n in range(4): a(f"v_fma_f32 {S[n]}, {S[n]}, s81, -v10")
for n in range(4): a(f"v_exp_f32 {S[n]}, {S[n]}")
ACC = [QB0, QB0 + 4]
for n in range(4):
    a(f"v_cvt_pk_bf16_f32 v{G0+12+n}, {S[n]}, {S[n]}")
for n in range(4):
    for d in range(2): a(f"v_and_b32 v{PA0+2*n+d}, v{G0+12+n}, {vN[d]}")
def pvm(m):
    for hl in range(2):
        c = "0" if m == 0 else vr(ACC[hl])
        a(f"v_mfma_f32_16x16x16_bf16 {vr(ACC[hl])}, {vr(PA0+2*m, 2)}, {vr(V0+4*m+2*hl, 2)}, {c}")
for m in range(NV1): pvm(m)
a(f"v_add_f32 v12, {S[0]}, {S[1]}")
a(f"v_add_f32 v13, {S[2]}, {S[3]}")
a("v_add_f32 v10, v12, v13")
a("s_mov_b64 exec, s[82:83]")
a(f"ds_add_f32 {vHD}, v10 offset:{L_LS}")
a("s_mov_b64 exec, -1")
a("v_mov_b32 v19, s6")
stamp(8)
if NV1 < 4:
    for code, wv in ((2, 2), (1, 4), (3, 5)):
        a(f"s_cmp_eq_u32 s87, {code}")
        a(f"s_cbranch_scc1 L_vw{wv}")
    for wv in (0, 2, 4, 5):
        if wv: a(f"L_vw{wv}:")
        a(f"s_waitcnt vmcnt({wv})")
    stamp(18)
    for m in range(NV1, 4): pvm(m)
a("s_cmp_lt_u32 s5, 4")
for hl in range(2):
    a(f"ds_write_b128 {vOW}, {vr(ACC[hl])} offset:{L_OR + hl*384}")
a("s_waitcnt lgkmcnt(0)")
stamp(9)
a("s_barrier")
a("s_cbranch_scc1 L_wo")
a(f"ds_read_b32 v11, {vA3} offset:{L_LS}")
a(f"ds_read_b32 v12, {vA3} offset:{L_MX}")
for w in range(8):
    a(f"ds_read_b64 v[{32+2*w}:{33+2*w}], {vA1} offset:{L_OR + w*3072}")
a("s_waitcnt lgkmcnt(8)")
a("v_log_f32 v13, v11")
a("v_rcp_f32 v11, v11")
a("v_fma_f32 v18, v12, s81, v13")
a("s_waitcnt lgkmcnt(4)")
a("v_pk_add_f32 v[32:33], v[32:33], v[34:35]")
a("v_pk_add_f32 v[36:37], v[36:37], v[38:39]")
a("s_waitcnt lgkmcnt(0)")
a("v_pk_add_f32 v[40:41], v[40:41], v[42:43]")
a("v_pk_add_f32 v[44:45], v[44:45], v[46:47]")
a("v_pk_add_f32 v[32:33], v[32:33], v[36:37]")
a("v_pk_add_f32 v[40:41], v[40:41], v[44:45]")
a("v_pk_add_f32 v[32:33], v[32:33], v[40:41]")
a("v_mul_f32 v16, v32, v11")
a("v_mul_f32 v17, v33, v11")
pub2(vA2, "v[16:19]", 60, "L_op")
stamp(10)
a("s_cmp_eq_u32 s5, 4")
a("s_cbranch_scc1 L_ffn2")
a("s_cmp_lg_u32 s5, 5")
a("s_cbranch_scc1 L_done")
a("s_cmp_lt_u32 s4, 24")
a("s_cbranch_scc1 L_tail")
a("L_done:")
if AMODE:
    a("s_cmp_lg_u32 s5, 7")
    a("s_cbranch_scc1 L_noes")
    a("s_lshl_b32 s32, s2, 3")
    a(f"s_add_u32 s32, s32, {WS_DIAG}")
    sbase(60, 14, "s32")
    a("v_mov_b32 v16, s58")
    a("v_mov_b32 v17, s6")
    a("s_mov_b64 exec, 1")
    a(f"global_store_dwordx2 v{ZR}, v[16:17], s[60:61] sc1")
    a("L_noes:")
if LITE:
    DIAG = 1; diag_flush(); DIAG = 0
diag_flush()
a("s_endpgm")
a("L_ffn2:")
a(f"v_cmp_gt_u32 s[40:41], 8, {vI16}")
a("s_waitcnt vmcnt(1)")
a("s_branch L_hchk")
a("L_hpoll:")
hgather()
a("s_waitcnt vmcnt(0)")
a("L_hchk:")
a("v_mov_b32 v14, s6")
a(f"v_cndmask_b32 v14, v14, v{HG+7}, s[40:41]")
tagcheck([HG+1, HG+3, HG+5, 14])
a("s_sub_u32 s100, s100, 1")
a("s_cbranch_scc1 L_hgot")
a("s_cbranch_vccnz L_hpoll")
a("L_hgot:")
H = [f"v{HG+2*n}" for n in range(4)]
for ctrl in ("quad_perm:[1,0,3,2]", "quad_perm:[2,3,0,1]", "row_half_mirror"):
    for n in range(4): dpp("v_add_f32", H[n], H[n], H[n], ctrl)
a("v_mov_b32 v30, 0x3d372713")
T4 = [f"v{32+n}" for n in range(4)]
for n in (0, 2): bf16_round_pair(H[n], H[n+1], H[n], H[n+1], "v9")
for n in range(4): a(f"v_lshlrev_b32 v{B1R+n}, 16, v{B1R+n}")
for n in range(4): a(f"v_add_f32 {H[n]}, {H[n]}, v{B1R+n}")
for n in (0, 2): bf16_round_pair(H[n], H[n+1], H[n], H[n+1], "v9")
for n in range(4): a(f"v_mul_f32 {T4[n]}, {H[n]}, {H[n]}")
for n in range(4): a(f"v_fma_f32 {T4[n]}, {T4[n]}, v30, 1.0")
for n in range(4): a(f"v_mul_f32 {T4[n]}, {T4[n]}, {H[n]}")
for n in range(4): a(f"v_mul_f32 {T4[n]}, 0xc0135761, {T4[n]}")
for n in range(4): a(f"v_exp_f32 {T4[n]}, {T4[n]}")
for n in range(4): a(f"v_add_f32 {T4[n]}, 1.0, {T4[n]}")
for n in range(4): a(f"v_rcp_f32 {T4[n]}, {T4[n]}")
for n in range(4): a(f"v_mul_f32 {H[n]}, {H[n]}, {T4[n]}")
for n in range(4): a(f"v_cvt_pk_bf16_f32 v{20+n}, {H[n]}, {H[n]}")
for n in range(3): dpp("v_mov_b32", f"v{24+n}", f"v{20+n}", None, "row_ror:8")
for rg in range(7):
    for d in range(4): a(f"v_and_b32 v{G0+4*rg+d}, v{20+rg}, {vM[d]}")
for rg in range(7):
    c = "0" if rg == 0 else vr(AC)
    a(f"v_mfma_f32_16x16x32_bf16 {vr(AC)}, {vr(G0+4*rg)}, {vr(X0+4*rg)}, {c}")
a("s_mov_b32 exec_hi, 0")
pack24(16, AC)
pub2(vA4, "v[16:19]", 62, "L_yp")
stamp(11)
diag_flush()
a("s_endpgm")
a("L_wo:")
a("s_cmp_eq_u32 s85, 0")
a("s_cbranch_scc1 L_opoll")
sbase(62, 62, SLOW)
OG0 = 32
a("L_opoll:")
for u in range(4):
    a(f"global_load_dwordx4 {vr(OG0+4*u)}, {vA1}, s[62:63] offset:{u*1024} sc1")
a("s_sub_u32 s100, s100, 1")
a("s_cbranch_scc1 L_ogot")
a("s_waitcnt vmcnt(0)")
tagcheck([OG0 + 3 + 4*n for n in range(4)])
a("s_cbranch_vccnz L_opoll")
a("L_ogot:")
a("s_waitcnt vmcnt(0)")
a(f"v_max3_f32 v12, v{OG0+2}, v{OG0+6}, v{OG0+10}")
a(f"ds_write_b32 v{ZR}, v19 offset:{L_FL+4}")
a(f"v_max_f32 v12, v12, v{OG0+14}")
stamp(11)
count(21)
for r in (8, 4, 2): dpp("v_max_f32", "v12", "v12", "v12", f"row_ror:{r}")
for u in range(4): a(f"v_sub_f32 v{OG0+4*u+2}, v{OG0+4*u+2}, v12")
for u in range(4): a(f"v_exp_f32 v{OG0+4*u+2}, v{OG0+4*u+2}")
a(f"v_mul_f32 v12, v{OG0+2}, v{OG0}")
a(f"v_mul_f32 v13, v{OG0+2}, v{OG0+1}")
a(f"v_add_f32 v14, v{OG0+2}, v{OG0+6}")
a(f"v_add_f32 v9, v{OG0+10}, v{OG0+14}")
for u in range(1, 4):
    a(f"v_fmac_f32 v12, v{OG0+4*u+2}, v{OG0+4*u}")
    a(f"v_fmac_f32 v13, v{OG0+4*u+2}, v{OG0+4*u+1}")
    if u == 1: a("v_add_f32 v14, v14, v9")
for r in (8, 4, 2):
    for x in ("v14", "v12", "v13"): dpp("v_add_f32", x, x, x, f"row_ror:{r}")
a("v_rcp_f32 v14, v14")
a("v_mul_f32 v12, v12, v14")
a("v_mul_f32 v13, v13, v14")
a("v_cvt_pk_bf16_f32 v12, v12, v12")
a("v_cvt_pk_bf16_f32 v13, v13, v13")
srcs = [("v12", "[0,0,2,2]"), ("v13", "[0,0,2,2]"), ("v12", "[1,1,3,3]"), ("v13", "[1,1,3,3]")]
for rg in range(4):
    for d in range(4):
        dpp("v_and_b32", f"v{PA0+4*rg+d}", srcs[rg][0], vM[d], f"quad_perm:{srcs[rg][1]}")
    if rg >= 1:
        c = "0" if rg == 1 else vr(AC)
        a(f"v_mfma_f32_16x16x32_bf16 {vr(AC)}, {vr(PA0+4*(rg-1))}, {vr(W0+4*(rg-1))}, {c}")
a(f"v_mfma_f32_16x16x32_bf16 {vr(AC)}, {vr(PA0+12)}, {vr(W0+12)}, {vr(AC)}")
a("s_mov_b32 exec_hi, 0")
pack24(16, AC)
pub2(vA2, "v[16:19]", 60, "L_sp")
stamp(12)
diag_flush()
a("s_endpgm")
a("L_tail:")
a("s_mov_b32 s48, 0x04000c0c")
a("s_mov_b32 s49, 0x0706000c")
a("s_cmp_eq_u32 s85, 0")
a("s_cbranch_scc1 L_flw")
sbase(64, 64, SLOW)
sbase(66, 66, SLOW)
a("L_flw:")
a(f"ds_read_b32 v8, v{ZR} offset:{L_FL+4}")
a("s_sub_u32 s100, s100, 1")
a("s_cbranch_scc1 L_flg")
a("s_waitcnt lgkmcnt(0)")
a("v_cmp_eq_u32 vcc, 0, v8")
a("s_cbranch_vccnz L_flw")
a("L_flg:")
a(f"s_mov_b32 s100, {SPIN}")
a("s_cmp_ge_u32 s4, 16")
a("s_cbranch_scc1 L_final")
RG = 32
a("L_rpoll:")
for u in range(4):
    a(f"global_load_dwordx4 {vr(RG+4*u)}, v14, s[64:65] offset:{u*1024} sc1")
a(f"global_load_dwordx4 {vr(RG+16)}, v14, s[66:67] sc1")
a("s_sub_u32 s100, s100, 1")
a("s_cbranch_scc1 L_rgot")
a("s_waitcnt vmcnt(0)")
tagcheck([RG + 3 + 4*n for n in range(5)])
a("s_cbranch_vccnz L_rpoll")
a("L_rgot:")
a("s_waitcnt vmcnt(0)")
stamp(12)
count(21)
for u in range(5): a(f"v_perm_b32 v{RG+4*u+3}, v{RG+4*u}, v{RG+4*u+1}, s48")
for u in range(5): a(f"v_perm_b32 v{RG+4*u+3}, v{RG+4*u+3}, v{RG+4*u+2}, s49")
Y = RG + 16
a(f"v_pk_add_f32 v[{RG}:{RG+1}], v[{RG}:{RG+1}], v[{RG+4}:{RG+5}]")
a(f"v_pk_add_f32 v[{RG+8}:{RG+9}], v[{RG+8}:{RG+9}], v[{RG+12}:{RG+13}]")
a(f"v_permlane32_swap_b32 v{Y}, v{Y+1}")
a(f"v_pk_add_f32 v[{RG+2}:{RG+3}], v[{RG+2}:{RG+3}], v[{RG+6}:{RG+7}]")
a(f"v_pk_add_f32 v[{RG+10}:{RG+11}], v[{RG+10}:{RG+11}], v[{RG+14}:{RG+15}]")
a(f"v_permlane32_swap_b32 v{Y+2}, v{Y+3}")
a(f"v_pk_add_f32 v[{RG}:{RG+1}], v[{RG}:{RG+1}], v[{RG+8}:{RG+9}]")
a(f"v_pk_add_f32 v[{RG+2}:{RG+3}], v[{RG+2}:{RG+3}], v[{RG+10}:{RG+11}]")
a(f"v_add_f32 v{Y}, v{Y}, v{Y+1}")
a(f"v_add_f32 v{Y+2}, v{Y+2}, v{Y+3}")
a(f"v_permlane32_swap_b32 v{RG}, v{RG+1}")
a(f"v_permlane32_swap_b32 v{RG+2}, v{RG+3}")
a(f"v_permlane16_swap_b32 v{Y}, v{Y+2}")
a(f"v_add_f32 v{RG}, v{RG}, v{RG+1}")
a(f"v_add_f32 v{RG+2}, v{RG+2}, v{RG+3}")
a(f"v_add_f32 v{Y}, v{Y}, v{Y+2}")
a(f"v_permlane16_swap_b32 v{RG}, v{RG+2}")
a(f"v_add_f32 v{RG}, v{RG}, v{RG+2}")
dpp("v_add_f32", "v17", f"v{Y}", f"v{Y}", "row_ror:8")
a("s_mov_b32 s32, 0x00ff00ff")
a("s_mov_b32 s33, 0x00ff00ff")
dpp("v_add_f32", "v16", f"v{RG}", f"v{RG}", "row_ror:8")
a("s_mov_b64 exec, s[32:33]")
a(f"global_store_dwordx4 {vA5}, v[16:19], s[68:69] sc1")
stamp(13)
diag_flush()
a("s_endpgm")
a("L_final:")
a("s_waitcnt vmcnt(0)")
a(f"v_lshlrev_b32 v48, 16, v{X0}")
a(f"v_lshlrev_b32 v49, 16, v{X0+1}")
a("L_fpoll:")
a(f"global_load_dwordx4 {vr(32)}, v14, s[46:47] sc1")
a("s_sub_u32 s100, s100, 1")
a("s_cbranch_scc1 L_fgot")
a("s_waitcnt vmcnt(0)")
tagcheck([35])
a("s_cbranch_vccnz L_fpoll")
a("L_fgot:")
a("s_waitcnt vmcnt(0)")
stamp(13)
count(21)
dpp("v_add_f32", "v32", "v32", "v32", "row_ror:8")
dpp("v_add_f32", "v33", "v33", "v33", "row_ror:8")
a("v_mov_b32 v34, v32")
a("v_mov_b32 v35, v33")
a("v_permlane16_swap_b32 v32, v34")
a("v_permlane16_swap_b32 v33, v35")
a("v_pk_add_f32 v[32:33], v[32:33], v[34:35]")
a("v_mov_b32 v34, v32")
a("v_mov_b32 v35, v33")
a("v_permlane32_swap_b32 v32, v34")
a("v_permlane32_swap_b32 v33, v35")
a("v_pk_add_f32 v[32:33], v[32:33], v[34:35]")
bf16_round_pair("v32", "v33", "v32", "v33", "v9")
a("v_add_f32 v33, v33, v49")
bf16_round("v33", "v33")
a("v_mul_f32 v50, 0xbfb8aa3b, v33")
a("v_exp_f32 v50, v50")
a("v_add_f32 v50, 1.0, v50")
a("v_rcp_f32 v50, v50")
a("v_mul_f32 v50, v50, v33")
bf16_round("v50", "v50")
a("v_mul_f32 v32, v32, v50")
bf16_round("v32", "v32")
a("v_add_f32 v32, v32, v48")
a("v_cvt_pk_bf16_f32 v32, v32, v32")
a("s_mov_b64 exec, 0xff")
a(f"global_store_short {vA6}, v32, s[12:13]")
a("s_cmp_lg_u32 s2, 128")
a("s_cbranch_scc1 L_noep")
a("s_mov_b64 exec, 1")
a(f"global_store_dword v{ZR}, v19, s[14:15]")
if AMP:
    a("s_memrealtime s[70:71]")
    a("s_waitcnt lgkmcnt(0)")
    a("s_sub_u32 s72, s70, s58")
    if AMODE:
        a("s_mov_b64 exec, -1")
        sbase(60, 14, WS_DIAG)
        a(f"v_lshlrev_b32 v8, 3, {vLANE}")
        a("L_es:")
        a("global_load_dwordx2 v[40:41], v8, s[60:61] sc1")
        a("s_waitcnt vmcnt(0)")
        a("v_cmp_ne_u32 vcc, s6, v41")
        a("s_cbranch_vccnz L_es")
        a("v_subrev_u32 v40, s58, v40")
        a("v_mov_b32 v42, v40")
        a("v_mov_b32 v43, v40")
        wave_allreduce("v_min_i32", "v42", "v44")
        wave_allreduce("v_max_i32", "v43", "v44")
        a("s_nop 1")
        a("v_readfirstlane_b32 s74, v42")
        a("v_readfirstlane_b32 s75, v43")
        a("s_nop 3")
        if AMODE == 1: a("s_sub_u32 s72, s72, s74")
        if AMODE == 2: a("s_sub_u32 s72, s75, s74")
        if AMODE >= 10:
            a(f"v_readlane_b32 s75, v40, {AMODE - 10}")
            a("s_nop 3")
            a("s_sub_u32 s72, s75, s74")
    a(f"s_mul_i32 s72, s72, {AMP}")
    a("s_min_u32 s72, s72, 100000")
    a("L_amp:")
    a("s_memrealtime s[74:75]")
    a("s_waitcnt lgkmcnt(0)")
    a("s_sub_u32 s73, s74, s70")
    a("s_cmp_lt_u32 s73, s72")
    a("s_cbranch_scc1 L_amp")
a("L_noep:")
if LITE:
    DIAG = 1; stamp(14); diag_flush(); DIAG = 0
stamp(14)
diag_flush()
a("L_end:")
a("s_endpgm")
a(".fill 1024, 4, 0xbf810000")

nv = 176 if (DIAG or LITE) else NVGPR
txt = header
txt += f"; @launch grid=(256,1,1) block=(512,1,1) lds={LDS_BYTES}\n"
txt += '.amdgcn_target "amdgcn-amd-amdhsa--gfx950"\n.text\n'
txt += f".globl {NAME}_kernel\n.p2align 8\n.type {NAME}_kernel,@function\n"
txt += a.text()
txt += f""".section .rodata,"a"
.p2align 6
.amdhsa_kernel {NAME}_kernel
  .amdhsa_next_free_vgpr {nv}
  .amdhsa_next_free_sgpr 102
  .amdhsa_accum_offset {nv}
  .amdhsa_group_segment_fixed_size 0
  .amdhsa_kernarg_size 104
  .amdhsa_user_sgpr_count 2
  .amdhsa_user_sgpr_kernarg_segment_ptr 1
  .amdhsa_system_sgpr_workgroup_id_x 1
.end_amdhsa_kernel
"""
open(OUT, "w").write(txt)
```
